```python
import torch

def _softmax(x, axis=-1):
    return torch.softmax(x, dim=axis)

def _gelu(x):
    return torch.nn.functional.gelu(x, approximate='tanh')

def _silu(x):
    return torch.nn.functional.silu(x)

def _sigmoid(x):
    return torch.sigmoid(x)

def _layernorm(x, axis=-1, eps=1e-05):
    m = x.mean(dim=axis, keepdim=True)
    v = x.var(dim=axis, keepdim=True, unbiased=False)
    return (x - m) / torch.sqrt(v + eps)

def _scatter_add(tgt, idx, src, axis=0):
    return tgt.clone().index_add_(axis, idx, src)

def _segment_sum(src, seg, n):
    out = torch.zeros((n,) + src.shape[1:], dtype=src.dtype)
    return out.index_add_(0, seg, src)

def _pad(x, pw):
    flat = tuple((v for pair in reversed(pw) for v in pair))
    return torch.nn.functional.pad(x, flat)
kernel_name = 'adaLN_cond__sliding_block_cached__glu_gated_geglu__decode'

def setup_inputs():

    _w = lambda a: (lambda t: t.to(torch.bfloat16) if t.is_floating_point() else t)(torch.as_tensor(a))

    def _A_setup():
        B, Sq, D = (1, 1, 576)
        Hq, Hkv, Sk, Dh = (32, 16, 65536, 128)
        assert Hq % Hkv == 0, (Hq, Hkv)
        return {'x': _w((lambda *s: torch.randn(*s, dtype=torch.bfloat16) * 0.1)(B, Sq, D)), 'k_cache': _w((lambda *s: torch.randn(*s, dtype=torch.bfloat16) * 0.8)(B, Hkv, Sk, Dh)), 'v_cache': _w((lambda *s: torch.randn(*s, dtype=torch.bfloat16) * 3.2)(B, Hkv, Sk, Dh)), 'wq': _w((lambda *s: torch.randn(*s, dtype=torch.bfloat16) * 0.8)(D, Hq * Dh) * D ** (-0.5)), 'wo': _w((lambda *s: torch.randn(*s, dtype=torch.bfloat16) * 3.2)(Hq * Dh, D) * (Hq * Dh) ** (-0.5))}
    _A_in = _A_setup()

    def _B_setup():
        B, S, Dm, Df = (1, 1, 576, 4608)
        return {'x': _w((lambda *s: torch.randn(*s, dtype=torch.bfloat16) * 0.1)(B, S, Dm)), 'w_gate': _w((lambda *s: torch.randn(*s, dtype=torch.bfloat16) * 3.2)(Dm, Df) * Dm ** (-0.5)), 'w_up': _w((lambda *s: torch.randn(*s, dtype=torch.bfloat16) * 3.2)(Dm, Df) * Dm ** (-0.5)), 'w_down': _w((lambda *s: torch.randn(*s, dtype=torch.bfloat16) * 3.2)(Df, Dm) * Df ** (-0.5))}
    _B_in = _B_setup()
    return {'A_x': _A_in['x'], 'A_k_cache': _A_in['k_cache'], 'A_v_cache': _A_in['v_cache'], 'A_wq': _A_in['wq'], 'A_wo': _A_in['wo'], 'B_x': _B_in['x'], 'B_w_gate': _B_in['w_gate'], 'B_w_up': _B_in['w_up'], 'B_w_down': _B_in['w_down'], 'c': _w((lambda *s: torch.randn(*s, dtype=torch.bfloat16) * 0.8)(1, 576) * 8.0), 'w_mod': _w((lambda *s: torch.randn(*s, dtype=torch.bfloat16) * 0.8)(576, 6 * 576) * 576 ** (-0.5) * 8.0)}

def reference(A_x, A_k_cache, A_v_cache, A_wq, A_wo, B_x, B_w_gate, B_w_up, B_w_down, c, w_mod):

    def _A_ref(x, k_cache, v_cache, wq, wo):
        B, Sq, D = x.shape
        Hq, Dh = (32, 128)
        Hkv, Sk = (k_cache.shape[1], k_cache.shape[2])
        W = min(4096, max(256, Sk // 4))
        rep = Hq // Hkv
        q = (lambda x, *d: x.permute(*d))((x @ wq).reshape(B, Sq, Hq, Dh), 0, 2, 1, 3)
        k = (lambda x, n, axis: torch.repeat_interleave(x, n, dim=axis))(k_cache[:, :, Sk - W:, :], rep, axis=1)
        v = (lambda x, n, axis: torch.repeat_interleave(x, n, dim=axis))(v_cache[:, :, Sk - W:, :], rep, axis=1)
        scores = torch.einsum('bhqd,bhkd->bhqk', q, k) * Dh ** (-0.5)
        p = _softmax(scores, axis=-1)
        o = torch.einsum('bhqk,bhkd->bhqd', p, v)
        return (lambda x, *d: x.permute(*d))(o, 0, 2, 1, 3).reshape(B, Sq, Hq * Dh) @ wo

    def _B_ref(x, w_gate, w_up, w_down):
        g = torch.einsum('bsd,df->bsf', x, w_gate)
        u = torch.einsum('bsd,df->bsf', x, w_up)
        h = _gelu(g) * u
        return torch.einsum('bsf,fd->bsd', h, w_down)
    x = A_x
    mod = (_silu(c) @ w_mod).reshape(c.shape[0], 6, 1, -1)
    sa, ca, ga, sb, cb, gb = (mod[:, 0].clone(), mod[:, 1].clone(), mod[:, 2].clone(), mod[:, 3].clone(), mod[:, 4].clone(), mod[:, 5].clone())
    h = _layernorm(x, axis=-1) * (1 + ca) + sa
    x = x + ga * _A_ref(h, A_k_cache, A_v_cache, A_wq, A_wo)
    h = _layernorm(x, axis=-1) * (1 + cb) + sb
    x = x + gb * _B_ref(h, B_w_gate, B_w_up, B_w_down)
    return x
```

```python
import re

REG = re.compile(r"^(-?)(?:\|)?([vsa])(?:(\d+)|\[(\d+):(\d+)\])(?:\|)?$")
TRANS = ("v_exp_f32", "v_log_f32", "v_rcp_f32", "v_rsq_f32", "v_sqrt_f32", "v_sin_f32", "v_cos_f32")

def regs(tok):
    tok = tok.strip()
    if tok == "vcc": return {("s", 106), ("s", 107)}
    if tok == "exec": return {("s", 126), ("s", 127)}
    if tok == "m0": return {("s", 124)}
    m = REG.match(tok)
    if not m: return set()
    f = m.group(2)
    if m.group(3) is not None: return {(f, int(m.group(3)))}
    return {(f, i) for i in range(int(m.group(4)), int(m.group(5)) + 1)}

class Ins:
    def __init__(self, text):
        self.text = text
        t = text.split(";")[0].strip()
        parts = t.split(None, 1)
        self.mn = mn = parts[0]
        rest = parts[1] if len(parts) > 1 else ""
        ops = [o.strip() for o in rest.split(",")] if rest else []
        mods = ""
        if ops:
            q = re.split(r"\s+", ops[-1], 1) if "quad_perm" not in rest else None
            if q is None:
                head, tail = rest.split("quad_perm", 1)
                ops = [o.strip() for o in head.strip().split(",")]
                mods = "quad_perm" + tail
            else:
                ops[-1] = q[0]; mods = q[1] if len(q) > 1 else ""
        self.ops = ops; self.mods = mods
        self.valu = mn.startswith("v_") and not mn.startswith("v_mfma")
        self.mfma = mn.startswith("v_mfma")
        self.vmem = mn.startswith(("buffer_", "global_"))
        self.ds = mn.startswith("ds_")
        self.salu = mn.startswith("s_")
        self.dpp = "_dpp" in mn
        self.trans = mn.replace("_e32", "").replace("_e64", "") in TRANS
        self.perml = mn.startswith("v_permlane")
        self.rdlane = mn.startswith(("v_readlane", "v_readfirstlane"))
        self.wrlane = mn.startswith("v_writelane")
        R = [regs(o) for o in ops]
        self.w = set(); self.r = set(); self.srcC = set(); self.srcAB = set(); self.stdata = set()
        self.slots = 1
        if mn == "s_nop": self.slots = int(ops[0], 0) + 1
        if self.mfma:
            self.w = R[0]; self.srcAB = R[1] | R[2]; self.srcC = R[3]; self.r = self.srcAB | self.srcC
        elif self.valu:
            self.w = set(R[0]); self.r = set().union(*R[1:]) if len(R) > 1 else set()
            if self.perml: self.w |= R[1]; self.r |= R[0]
            if self.dpp or self.wrlane or mn.startswith(("v_fmac", "v_dot2c")): self.r |= R[0]
            if "_co_" in mn: self.w |= R[1]
            if mn.startswith("v_cndmask") and len(ops) == 3: self.r |= regs("vcc")
        elif self.vmem:
            lds = " lds" in (" " + mods)
            if "_load" in mn and not lds:
                self.w = R[0]; self.r = set().union(*R[1:])
                if "d16" in mn: self.r |= R[0]
            else:
                self.r = set().union(*R)
                if lds: self.r |= regs("m0")
                if "_store" in mn and ("x3" in mn or "x4" in mn):
                    self.stdata = R[0] if mn.startswith("buffer_") else R[1]
        elif self.ds:
            if mn.startswith(("ds_read", "ds_bpermute", "ds_permute", "ds_swizzle")) or "_rtn" in mn:
                self.w = R[0]; self.r = set().union(*R[1:])
            else:
                self.r = set().union(*R)
        elif self.salu:
            if mn.startswith(("s_cmp", "s_cbranch", "s_branch", "s_waitcnt", "s_nop", "s_sleep", "s_barrier", "s_endpgm", "s_bitcmp", "s_setprio")):
                self.r = set().union(*R) if R else set()
            else:
                self.w = R[0] if R else set(); self.r = set().union(*R[1:]) if len(R) > 1 else set()
                if "saveexec" in mn: self.w = self.w | regs("exec")

def need(p, c):
    n = 0
    pw_v = {x for x in p.w if x[0] in "va"}; pw_s = {x for x in p.w if x[0] == "s"}
    if p.valu:
        if pw_s:
            if c.vmem and pw_s & c.r: n = max(n, 5)
            if (c.rdlane or c.wrlane) and len(c.ops) > 2 and pw_s & regs(c.ops[2]): n = max(n, 4)
            if (c.valu or c.mfma) and pw_s & c.r: n = max(n, 2)
        if pw_v:
            if c.dpp and pw_v & c.r: n = max(n, 2)
            if c.perml and pw_v & c.r: n = max(n, 2)
            if c.rdlane and pw_v & c.r: n = max(n, 1)
            if c.mfma and pw_v & c.r: n = max(n, 2)
            if p.trans and (c.valu or c.mfma) and not c.trans and pw_v & c.r: n = max(n, 1)
    if p.salu and ("s", 124) in p.w and (c.vmem or c.ds or c.wrlane or c.rdlane) and ("s", 124) in c.r: n = max(n, 1)
    if p.stdata and (c.valu or c.mfma) and p.stdata & c.w: n = max(n, 2)
    if p.stdata and (c.vmem or c.ds) and p.stdata & c.w: n = max(n, 1)
    if p.mfma:
        if c.mfma:
            if p.w & c.srcAB: n = max(n, 8)
            if p.w & c.srcC and p.w != c.srcC: n = max(n, 6)
            if p.w & c.w and p.w != c.srcC: n = max(n, 8)
        elif (c.valu or c.vmem or c.ds) and (p.w & (c.r | c.w)): n = max(n, 8)
        if c.valu and p.srcC & c.w: n = max(n, 3)
    return n

class Emit:
    WINDOW = 10
    def __init__(self):
        self.lines = []
        self.hist = [[]]
        self.at_label = {}
        self.uid = 0
    def raw(self, s): self.lines.append(s)
    def label(self, name):
        self.lines.append(name + ":")
        self.hist = self.hist + self.at_label.pop(name, [])
        self.hist = [h for h in self.hist if h is not None]
        if not self.hist: self.hist = [[]]
    def newlabel(self, base):
        self.uid += 1
        return f"L_{base}_{self.uid}"
    def __call__(self, text):
        for t in text.split("\n"):
            t = t.strip()
            if not t or t.startswith(";"): continue
            self._one(t)
    def _one(self, text):
        c = Ins(text)
        pad = 0
        for h in self.hist:
            d = 0
            for p in reversed(h):
                pad = max(pad, need(p, c) - d)
                d += p.slots
                if d >= self.WINDOW: break
        if pad > 0:
            nop = Ins(f"s_nop {pad-1}")
            self.lines.append("    " + nop.text)
            self._push(nop)
        self.lines.append("    " + text)
        self._push(c)
        if c.mn.startswith("s_cbranch") or c.mn == "s_branch":
            self.at_label.setdefault(c.ops[0], []).extend([list(h) for h in self.hist])
            if c.mn == "s_branch": self.hist = []
        if c.mn == "s_endpgm": self.hist = []
    def _push(self, i):
        if not self.hist: self.hist = [[]]
        nh = []
        seen = set()
        for h in self.hist:
            h2 = (h + [i])[-self.WINDOW:]
            key = tuple(id(x) for x in h2)
            if key not in seen:
                seen.add(key); nh.append(h2)
        self.hist = nh
    def text(self): return "\n".join(self.lines) + "\n"
```

```python
import sys, struct
from emit import Emit

NAME = "adaLN_cond__sliding_block_cached__glu_gated_geglu__decode"
KNAME = NAME + "_kernel"

def f2u(x): return struct.unpack("<I", struct.pack("<f", x))[0]

H1, HMOD, H4, H6 = 0x1000, 0x8000, 0xD000, 0x12000
H2, HML, H5, H3 = 0x20000, 0x30000, 0x38000, 0x50000
SLOW = 0x80000
STAMPS = 0x20000000
QS, PS, PVP, PARTE, PARTP, STAT, CNT, KIMG = 0, 0x800, 0x1000, 0x2000, 0x3400, 0x4800, 0x4900, 0x5000
LDS_BYTES = 0x15000
C_KI, C_P, C_VI, C_PV, C_E, C_PP, C_PUB = CNT, CNT + 16, CNT + 32, CNT + 36, CNT + 40, CNT + 44, CNT + 48

DEF = dict(diag=False, DK=5, DV=5, DE=8, DWO=2, DP=3, DMOD=2, DDN=4, NFAST=64, SPINMAX=1 << 16, fast=True,
           mod_gate="K", prepoll=True, sleep=1)

def gen(**kw):
    P = dict(DEF); P.update(kw)
    e = Emit()
    diag = P["diag"]
    LOG2E = f2u(1.4426950408889634)

    def stamp(k):
        if diag:
            e(f"s_memrealtime s[80:81]\ns_waitcnt lgkmcnt(0)\nv_writelane_b32 v31, s80, {k}")
    def srd(d, lo, nbytes, off=None):
        if off is None:
            e(f"s_mov_b32 s{d}, s{lo}\ns_and_b32 s{d+1}, s{lo+1}, 0xffff")
        else:
            e(f"s_add_u32 s{d}, s{lo}, {off}\ns_addc_u32 s{d+1}, s{lo+1}, 0\ns_and_b32 s{d+1}, s{d+1}, 0xffff")
        e(f"s_mov_b32 s{d+2}, {nbytes}\ns_mov_b32 s{d+3}, 0x20000")
    def bf16r(d, s):
        e(f"v_cvt_pk_bf16_f32 v{d}, v{s}, v{s}\nv_and_b32 v{d}, 0xffff0000, v{d}")
    def red(op, chains, full=True):
        steps = ["row_ror:8 row_mask:0xf", "row_ror:4 row_mask:0xf", "row_ror:2 row_mask:0xf", "row_ror:1 row_mask:0xf"]
        if full: steps += ["row_bcast:15 row_mask:0xa", "row_bcast:31 row_mask:0xc"]
        for st in steps:
            for c in chains:
                e(f"{op}_dpp v{c}, v{c}, v{c} {st} bank_mask:0xf")
    def lds_wait(vaddr, off, val, tmp=2):
        L = e.newlabel("lw"); D = e.newlabel("lwd")
        e(f"s_mov_b32 s53, {P['SPINMAX']*8}")
        e.label(L)
        e(f"""ds_read_b32 v{tmp}, v{vaddr} offset:{off}
              s_waitcnt lgkmcnt(0)
              v_readfirstlane_b32 s54, v{tmp}
              s_cmp_ge_u32 s54, {val}
              s_cbranch_scc1 {D}
              s_sleep 1
              s_sub_u32 s53, s53, 1
              s_cmp_lg_u32 s53, 0
              s_cbranch_scc1 {L}""")
        e.label(D)
    def gather(loads, tags, vaddr, intra):
        L = e.newlabel("g"); D = e.newlabel("gd")
        e("s_mov_b32 s53, 0")
        if intra and not P["fast"]:
            e(f"v_add_u32 v{vaddr}, {SLOW}, v{vaddr}")
        e.label(L)
        for ld in loads: e(ld + " sc1")
        e("s_waitcnt vmcnt(0)")
        e(f"v_cmp_ne_u32 vcc, s7, v{tags[0]}")
        for i, t in enumerate(tags[1:]):
            pr = 56 + 2 * (i & 1)
            e(f"v_cmp_ne_u32_e64 s[{pr}:{pr+1}], s7, v{t}\ns_or_b64 vcc, vcc, s[{pr}:{pr+1}]")
        if len(tags) == 1: e("s_or_b64 vcc, vcc, vcc")
        e(f"s_cbranch_scc0 {D}")
        e("s_add_u32 s53, s53, 1")
        if intra and P["fast"]:
            e(f"s_cmp_eq_u32 s53, {P['NFAST']}\ns_cselect_b32 s54, {SLOW}, 0\nv_add_u32 v{vaddr}, s54, v{vaddr}")
        if P["sleep"]: e(f"s_sleep {P['sleep']}")
        e(f"s_cmp_lt_u32 s53, {P['SPINMAX']}\ns_cbranch_scc1 {L}")
        e.label(D)
    def prepoll(soff, offs):
        if not P["prepoll"]: return
        L = e.newlabel("pp"); D = e.newlabel("ppd")
        e(f"s_add_u32 s70, s40, s{soff}\ns_addc_u32 s71, s41, 0\ns_mov_b32 s53, 0")
        e.label(L)
        for i, o in enumerate(offs): e(f"s_load_dword s{72+i}, s[70:71], {o} glc")
        e("s_waitcnt lgkmcnt(0)")
        e("s_xor_b32 s54, s72, s7")
        for i in range(1, len(offs)): e(f"s_xor_b32 s55, s{72+i}, s7\ns_or_b32 s54, s54, s55")
        e(f"s_cmp_eq_u32 s54, 0\ns_cbranch_scc1 {D}")
        e(f"s_add_u32 s53, s53, 1\ns_cmp_lt_u32 s53, {P['NFAST']}\ns_cbranch_scc1 {L}")
        e.label(D)
    def publish(st, intra, soff):
        if intra:
            if P["fast"]: e(st.format(so=f"s{soff}"))
            e(f"s_add_u32 s54, s{soff}, {SLOW}")
            e(st.format(so="s54") + " sc1")
        else:
            e(st.format(so=f"s{soff}") + " sc1")
    def blk_load(sr, vo, so, RS, r0, D):
        for t in range(8):
            e(f"buffer_load_dwordx4 v[{r0+4*t}:{r0+4*t+3}], v{vo}, s[{sr}:{sr+3}], s{so} offen nt")
            if t < 7: e(f"s_add_u32 s{so}, s{so}, {8*RS}")
            if t >= D - 1 and t < 7: e(f"s_waitcnt vmcnt({D-1})")
    def blk_voff(vo, RS):
        e(f"v_lshrrev_b32 v{vo}, 3, v0\nv_mul_u32_u24 v{vo}, {RS}, v{vo}\nv_and_b32 v2, 7, v0\nv_lshl_add_u32 v{vo}, v2, 4, v{vo}")
    def masks():
        e("""v_and_b32 v2, 1, v0
             v_cmp_eq_u32 vcc, 1, v2
             v_mov_b32 v3, 0xffff
             v_mov_b32 v8, 0xffff0000
             v_cndmask_b32 v3, v3, v8, vcc
             v_bfe_u32 v2, v0, 1, 2""")
        for j in range(4):
            e(f"v_cmp_eq_u32 vcc, {j}, v2\nv_cndmask_b32 v{4+j}, 0, v3, vcc")
    def aw_consts():
        masks()
        e("""v_lshrrev_b32 v3, 3, v0
             v_lshlrev_b32 v3, 2, v3
             v_lshlrev_b32 v29, 2, v0
             v_lshlrev_b32 v30, 3, v0
             v_mov_b32 v1, 0
             v_and_b32 v2, 7, v0
             v_lshlrev_b32 v28, 5, v2
             v_and_b32 v2, 16, v0
             v_add_u32 v28, v28, v2
             v_and_b32 v2, 32, v0
             v_lshl_add_u32 v28, v2, 3, v28
             s_lshl_b32 s54, s6, 9
             v_add_u32 v28, s54, v28
             s_mov_b32 s60, 0x00ff00ff
             s_mov_b32 s61, 0xff00ff00""")
    def blk_mfma(hd, r0, first, vb=3, step=32):
        for t in range(8): e(f"ds_bpermute_b32 v{8+t}, v{vb}, v{hd} offset:{step*t}")
        for t in range(8):
            e(f"s_waitcnt lgkmcnt({7-t})")
            a = 96 + 4 * t
            for j in range(4): e(f"v_and_b32 v{a+j}, v{8+t}, v{4+j}")
            if t > 0:
                c = "0" if (first and t == 1) else "v[24:27]"
                e(f"v_mfma_f32_16x16x32_bf16 v[24:27], v[{a-4}:{a-1}], v[{r0+4*t-4}:{r0+4*t-1}], {c}")
        e(f"v_mfma_f32_16x16x32_bf16 v[24:27], v[124:127], v[{r0+28}:{r0+31}], v[24:27]")
    def blk_reduce(part, cnt, n, notlast):
        e(f"""v_mov_b32 v2, 1
              s_mov_b64 exec, s[60:61]
              ds_write_b128 v28, v[24:27] offset:{part}
              s_mov_b64 exec, 1
              ds_add_rtn_u32 v2, v1, v2 offset:{cnt}
              s_mov_b64 exec, -1
              s_waitcnt lgkmcnt(0)
              v_readfirstlane_b32 s54, v2""")
        nmax = n if isinstance(n, int) else 5
        if isinstance(n, int): e(f"s_cmp_lg_u32 s54, {n-1}")
        else: e(f"s_add_u32 s54, s54, 1\ns_cmp_lg_u32 s54, {n}")
        e(f"s_cbranch_scc1 {notlast}")
        u = part // 256
        for w in range(nmax):
            e(f"ds_read2st64_b32 v[{8+2*w}:{9+2*w}], v29 offset0:{u+2*w} offset1:{u+2*w+1}")
        if not isinstance(n, int):
            e(f"s_cmp_eq_u32 {n}, 5\ns_cselect_b32 s54, -1, 0")
        for w in range(nmax):
            e(f"s_waitcnt lgkmcnt({nmax-1-w})")
            e(f"v_add_f32 v{8+2*w}, v{8+2*w}, v{9+2*w}")
            if not isinstance(n, int) and w == 4: e("v_and_b32 v16, s54, v16")
            if w > 0: e(f"v_add_f32 v8, v8, v{8+2*w}")
    def pack4(a, b, c, d):
        e(f"v_perm_b32 v{a}, v{a}, v{d}, s62\nv_perm_b32 v{b}, v{b}, v{d}, s63\nv_perm_b32 v{c}, v{c}, v{d}, s64\nv_mov_b32 v{a+3}, s7")
    def pack_consts():
        e("s_mov_b32 s62, 0x07060501\ns_mov_b32 s63, 0x07060502\ns_mov_b32 s64, 0x07060503\ns_mov_b32 s65, 0x0c04000c")
    def publish_cols_f16p(soff):
        e("""v_mov_b32 v10, v8
             v_permlane32_swap_b32 v8, v10
             v_mov_b32 v9, v8
             v_mov_b32 v11, v10
             v_permlane16_swap_b32 v8, v9
             v_permlane16_swap_b32 v10, v11""")
        pack4(8, 9, 10, 11)
        e("s_mov_b64 exec, 0xffff")
        publish("buffer_store_dwordx4 v[8:11], v27, s[44:47], {so} offen", False, soff)
        e("s_mov_b64 exec, -1")
    def unpack_reduce(n, base=8):
        for k in range(n):
            b = base + 4 * k
            e(f"v_perm_b32 v{b+3}, v{b+1}, v{b}, s65\nv_lshl_or_b32 v{b+3}, v{b+2}, 24, v{b+3}")
        for k in range(1, n):
            for i in range(4): e(f"v_add_f32 v{base+i}, v{base+i}, v{base+4*k+i}")
        b = base
        e(f"""v_permlane32_swap_b32 v{b}, v{b+2}
              v_permlane32_swap_b32 v{b+1}, v{b+3}
              v_add_f32 v{b}, v{b}, v{b+2}
              v_add_f32 v{b+1}, v{b+1}, v{b+3}
              v_permlane16_swap_b32 v{b}, v{b+1}
              v_add_f32 v{b}, v{b}, v{b+1}""")
    def ln_finish(x, mean, var, out, t):
        e(f"""v_cvt_pk_bf16_f32 v{t}, v{mean}, v{var}
              v_lshlrev_b32 v{mean}, 16, v{t}
              v_and_b32 v{var}, 0xffff0000, v{t}
              v_add_f32 v{var}, {hex(f2u(1e-5))}, v{var}
              v_sub_f32 v{out}, v{x}, v{mean}
              v_cvt_pk_bf16_f32 v{t}, v{out}, v{var}
              v_and_b32 v{var}, 0xffff0000, v{t}
              v_sqrt_f32 v{var}, v{var}
              v_lshlrev_b32 v{out}, 16, v{t}""")
        bf16r(var, var)
        e(f"v_rcp_f32 v{var}, v{var}\nv_mul_f32 v{out}, v{out}, v{var}")
        bf16r(out, out)
    def silu_dup(x, t):
        e(f"""v_mul_f32 v{t}, {hex(f2u(-1.4426950408889634))}, v{x}
              v_exp_f32 v{t}, v{t}
              v_add_f32 v{t}, 1.0, v{t}
              v_rcp_f32 v{t}, v{t}
              v_mul_f32 v{x}, v{x}, v{t}
              v_cvt_pk_bf16_f32 v{x}, v{x}, v{x}""")
    def x1_from(attn, ga, x):
        bf16r(attn, attn)
        e(f"v_mul_f32 v{attn}, v{ga}, v{attn}")
        bf16r(attn, attn)
        e(f"v_add_f32 v{attn}, v{x}, v{attn}")
        bf16r(attn, attn)
    def start_barrier():
        e("""s_waitcnt lgkmcnt(0)
             s_mul_i32 s7, s42, 1664525
             s_add_u32 s7, s7, 1013904223
             s_barrier""")

    e.raw(open("cdna_kernels/" + NAME + ".s.ref").read().split("; Override launch")[0].rstrip("\n"))
    e.raw(f"; @launch grid=(256,1,1) block=(1024,1,1) lds={LDS_BYTES}")
    e.raw('.amdgcn_target "amdgcn-amd-amdhsa--gfx950"\n.text')
    e.raw(f".globl {KNAME}\n.p2align 8\n.type {KNAME},@function\n{KNAME}:")
    e("""s_cmp_ge_u32 s2, 256
         s_cbranch_scc1 L_end
         s_load_dwordx16 s[16:31], s[0:1], 0
         s_load_dwordx8 s[32:39], s[0:1], 64
         s_load_dwordx2 s[40:41], s[0:1], 104
         v_lshrrev_b32 v1, 6, v0
         v_and_b32 v0, 63, v0
         s_and_b32 s4, s2, 7
         s_lshr_b32 s5, s2, 3
         v_readfirstlane_b32 s3, v1""")
    if diag: e("v_mov_b32 v31, 0")
    e("""s_lshl_b32 s52, s4, 25
         s_lshr_b32 s54, s5, 4
         s_lshl_b32 s54, s54, 24
         s_add_u32 s52, s52, s54
         s_and_b32 s54, s5, 15
         s_lshl_b32 s54, s54, 16
         s_add_u32 s52, s52, s54
         s_add_u32 s52, s52, 0xf00000
         s_waitcnt lgkmcnt(0)
         s_load_dword s42, s[40:41], 0""")
    srd(44, 40, 0x40000000)
    if diag:
        e("s_memrealtime s[80:81]")
    e("""s_cmp_ge_u32 s3, 8
         s_cbranch_scc1 L_aw
         s_cmp_ge_u32 s3, 4
         s_cbranch_scc1 L_vw""")

    srd(8, 18, 65536, "s52")
    e("""v_lshrrev_b32 v1, 4, v0
         v_and_b32 v2, 15, v0
         v_xor_b32 v3, v1, v2
         v_lshlrev_b32 v3, 4, v3
         v_lshl_add_u32 v4, v1, 8, v3
         v_xor_b32 v5, 64, v4
         s_lshl_b32 s52, s3, 14
         v_xor_b32 v6, 0x80, v4
         v_xor_b32 v7, 0xc0, v4""")
    e(f"s_add_u32 m0, s52, {KIMG}")
    DK = P["DK"]
    for u in range(16):
        e(f"buffer_load_dwordx4 v{4+(u&3)}, s[8:11], s52 offen offset:{(u&3)*1024} nt lds")
        if (u & 3) == 3 and u < 15: e("s_addk_i32 s52, 0x1000\ns_addk_i32 m0, 0x1000")
        if u == DK - 1:
            start_barrier()
            if diag: e("v_writelane_b32 v31, s80, 0")
        if u >= DK - 1 and u < 15: e(f"s_waitcnt vmcnt({DK-1})")
    e(f"""s_lshl_b32 s54, s3, 2
          v_mov_b32 v29, s54
          v_mov_b32 v30, 1
          ds_write_b32 v29, v30 offset:{C_KI}""")
    stamp(1)
    e(f"""s_lshl_b32 s54, s3, 14
          s_add_u32 s54, s54, {KIMG}
          v_lshl_add_u32 v4, v2, 8, v3
          v_add_u32 v4, s54, v4
          v_xor_b32 v5, 64, v4
          v_xor_b32 v6, 0x80, v4
          v_xor_b32 v7, 0xc0, v4
          s_lshl_b32 s54, s3, 9
          v_lshl_add_u32 v24, v0, 2, s54
          v_and_b32 v25, 1, v0
          v_lshlrev_b32 v25, 8, v25
          v_lshl_add_u32 v25, v1, 4, v25
          v_add_u32 v25, s54, v25
          v_and_b32 v26, 3, v0
          v_lshlrev_b32 v26, 6, v26
          v_and_b32 v27, 60, v0
          v_add3_u32 v26, v26, v27, s54
          v_lshlrev_b32 v27, 4, v0
          v_lshlrev_b32 v28, 4, v0
          s_lshl_b32 s66, s4, 1
          s_lshr_b32 s54, s5, 4
          s_add_u32 s66, s66, s54
          s_lshl_b32 s67, s66, 12
          s_add_u32 s67, s67, {H2}
          s_lshl_b32 s68, s66, 10
          s_add_u32 s68, s68, {HML}
          s_and_b32 s54, s5, 15
          s_lshl_b32 s54, s54, 2
          s_add_u32 s54, s54, s3
          s_lshl_b32 s69, s54, 4
          s_add_u32 s69, s69, s68
          s_mov_b32 s82, 0xffff0000
          s_mov_b32 s83, 0
          s_mov_b32 s84, 0
          s_mov_b32 s85, 0xffff
          s_mov_b32 s86, 0
          s_mov_b32 s87, 0xffff0000
          s_mov_b32 s88, {hex(LOG2E)}
          s_waitcnt vmcnt(0)""")
    stamp(2)
    for t in range(4):
        for i in range(4):
            r = 32 + 16 * t + 4 * i
            e(f"ds_read_b128 v[{r}:{r+3}], v{4+i} offset:{t*4096}")
    if P["fast"]: prepoll(67, [4 + 512 * k for k in range(8)])
    gather([f"buffer_load_dwordx4 v[{8+4*k}:{11+4*k}], v27, s[44:47], s67 offen offset:{1024*k}" for k in range(4)],
           [9, 11, 13, 15, 17, 19, 21, 23], 27, True)
    stamp(3)
    e(f"""v_add_f32 v8, v8, v16
          v_add_f32 v10, v10, v18
          v_add_f32 v12, v12, v20
          v_add_f32 v14, v14, v22
          v_cvt_pk_bf16_f32 v8, v8, v10
          v_cvt_pk_bf16_f32 v12, v12, v14
          ds_write_b32 v24, v8 offset:{QS}
          ds_write_b32 v24, v12 offset:{QS+256}""")
    for i in range(4): e(f"ds_read_b128 v[{96+4*i}:{99+4*i}], v25 offset:{QS+64*i}")
    for i in range(4):
        e(f"s_waitcnt lgkmcnt({3-i})")
        for t in range(4):
            r = 32 + 16 * t + 4 * i; d = 112 + 4 * t
            c = "0" if i == 0 else f"v[{d}:{d+3}]"
            e(f"v_mfma_f32_16x16x32_bf16 v[{d}:{d+3}], v[{96+4*i}:{99+4*i}], v[{r}:{r+3}], {c}")
    for h in range(2):
        e(f"v_cndmask_b32_e64 v{8+h}, v{112+h}, v{116+h}, s[82:83]")
    for h in range(2):
        e(f"v_cndmask_b32_e64 v{8+h}, v{8+h}, v{120+h}, s[84:85]")
    for h in range(2):
        e(f"v_cndmask_b32_e64 v{8+h}, v{8+h}, v{124+h}, s[86:87]")
    SC = hex(f2u(128 ** -0.5))
    e(f"""v_cvt_pk_bf16_f32 v10, v8, v9
          v_lshlrev_b32 v8, 16, v10
          v_and_b32 v9, 0xffff0000, v10
          v_mul_f32 v8, {SC}, v8
          v_mul_f32 v9, {SC}, v9
          v_cvt_pk_bf16_f32 v10, v8, v9
          v_lshlrev_b32 v8, 16, v10
          v_and_b32 v9, 0xffff0000, v10
          v_mov_b32 v10, v8
          v_mov_b32 v11, v9""")
    red("v_max_f32", [10, 11])
    e("""v_readlane_b32 s90, v10, 63
         v_readlane_b32 s91, v11, 63
         v_subrev_f32 v13, s90, v8
         v_subrev_f32 v14, s91, v9
         v_mul_f32 v13, s88, v13
         v_mul_f32 v14, s88, v14
         v_exp_f32 v13, v13
         v_exp_f32 v14, v14
         s_lshr_b32 s54, s90, 16
         s_or_b32 s54, s54, s91
         v_mov_b32 v12, s54
         v_mov_b32 v15, s7""")
    red("v_add_f32", [13, 14])
    e("v_mov_b32 v2, 0\ns_mov_b32 s58, 0\ns_mov_b32 s59, 0x80000000\ns_mov_b64 exec, s[58:59]")
    publish("buffer_store_dwordx4 v[12:15], v2, s[44:47], {so} offen", True, 69)
    e("s_mov_b64 exec, -1")
    stamp(4)
    gather(["buffer_load_dwordx4 v[16:19], v28, s[44:47], s68 offen"], [19], 28, True)
    stamp(5)
    e("""v_lshlrev_b32 v20, 16, v16
         v_and_b32 v21, 0xffff0000, v16
         v_mov_b32 v10, v20
         v_mov_b32 v11, v21""")
    red("v_max_f32", [10, 11])
    e("""v_readlane_b32 s90, v10, 63
         v_readlane_b32 s91, v11, 63
         v_subrev_f32 v20, s90, v20
         v_subrev_f32 v21, s91, v21
         v_subrev_f32 v8, s90, v8
         v_subrev_f32 v9, s91, v9
         v_mul_f32 v20, s88, v20
         v_mul_f32 v21, s88, v21
         v_mul_f32 v8, s88, v8
         v_mul_f32 v9, s88, v9
         v_exp_f32 v20, v20
         v_exp_f32 v21, v21
         v_exp_f32 v8, v8
         v_exp_f32 v9, v9
         v_mul_f32 v20, v20, v17
         v_mul_f32 v21, v21, v18""")
    red("v_add_f32", [20, 21])
    e(f"""v_rcp_f32 v20, v20
          v_rcp_f32 v21, v21
          v_readlane_b32 s90, v20, 63
          v_readlane_b32 s91, v21, 63
          v_mul_f32 v8, s90, v8
          v_mul_f32 v9, s91, v9
          v_cvt_pk_bf16_f32 v8, v8, v8
          v_cvt_pk_bf16_f32 v9, v9, v9
          ds_write_b32 v26, v8 offset:{PS}
          ds_write_b32 v26, v9 offset:{PS+256}
          ds_write_b32 v29, v30 offset:{C_P}""")
    stamp(6)
    e("""s_cmp_lg_u32 s3, 0
         s_cbranch_scc1 L_exit
         s_cmp_ge_u32 s5, 27
         s_cbranch_scc1 L_exit
         s_mov_b32 s6, 8""")
    aw_consts()
    e("""s_cmp_lt_u32 s5, 9
         s_cbranch_scc1 L_wd_down
         s_branch L_gu_post""")

    e.label("L_vw")
    CODE_KB = P.get("code_kb", 16)
    e("s_getpc_b64 s[70:71]")
    e.raw("L_pcref:")
    e(f"""s_sub_u32 s70, s70, L_pcref-{KNAME}
          s_subb_u32 s71, s71, 0
          s_sub_u32 s3, s3, 4
          v_lshlrev_b32 v27, 4, v0
          s_lshl_b32 s54, s3, 10
          v_add_u32 v2, s54, v27""")
    for i in range((CODE_KB + 3) // 4):
        e(f"global_load_dwordx4 v[96:99], v2, s[70:71]")
        if i < (CODE_KB + 3) // 4 - 1: e("v_add_u32 v2, 0x1000, v2")
    srd(8, 20, 65536, "s52")
    masks()
    pack_consts()
    e(f"""s_lshl_b32 s54, s3, 2
          v_mov_b32 v29, s54
          v_mov_b32 v1, 0
          s_lshl_b32 s52, s3, 14
          v_bfe_u32 v2, v0, 3, 1
          v_lshlrev_b32 v28, 8, v2
          v_and_b32 v3, 48, v0
          v_lshl_add_u32 v28, v3, 2, v28
          s_lshl_b32 s54, s3, 9
          v_add_u32 v28, s54, v28
          v_and_b32 v3, 32, v0
          v_lshl_add_u32 v30, v2, 4, v3
          v_and_b32 v3, 7, v0
          v_lshl_add_u32 v30, v3, 1, v30
          v_bfe_u32 v3, v0, 4, 1
          v_add_u32 v30, v30, v3
          v_lshlrev_b32 v30, 4, v30
          s_lshl_b32 s54, s3, 10
          v_add_u32 v30, s54, v30
          s_lshl_b32 s66, s4, 5
          s_add_u32 s66, s66, s5
          s_lshl_b32 s66, s66, 10
          s_add_u32 s66, s66, {H3}""")
    start_barrier()
    if diag: e("v_writelane_b32 v31, s80, 0")
    lds_wait(29, C_KI, 1)
    stamp(1)
    DV = P["DV"]
    for u in range(16):
        e(f"buffer_load_dwordx4 v[{32+4*u}:{35+4*u}], v27, s[8:11], s52 offen offset:{(u&3)*1024} nt")
        if (u & 3) == 3 and u < 15: e("s_addk_i32 s52, 0x1000")
        if u >= DV - 1 and u < 15: e(f"s_waitcnt vmcnt({DV-1})")
    e(f"""v_mov_b32 v2, 1
          s_mov_b64 exec, 1
          ds_add_u32 v1, v2 offset:{C_VI}
          s_mov_b64 exec, -1""")
    stamp(2)
    lds_wait(29, C_P, 1)
    stamp(3)
    for i in range(4): e(f"ds_read_b128 v[{8+4*i}:{11+4*i}], v28 offset:{PS+16*i}")
    for u in range(16):
        if u % 4 == 0: e(f"s_waitcnt lgkmcnt({3-u//4})")
        a = 96 + 4 * (u % 8)
        for j in range(4): e(f"v_and_b32 v{a+j}, v{8+u}, v{4+j}")
        if u > 0:
            pa = 96 + 4 * ((u - 1) % 8)
            if 15 - (u - 1) < DV: e(f"s_waitcnt vmcnt({15-(u-1)})")
            c = "0" if u == 1 else "v[24:27]"
            if u == 1: e("v_mov_b32 v3, v27")
            e(f"v_mfma_f32_16x16x32_bf16 v[24:27], v[{pa}:{pa+3}], v[{32+4*(u-1)}:{35+4*(u-1)}], {c}")
    e("s_waitcnt vmcnt(0)")
    stamp(4)
    e(f"""v_mfma_f32_16x16x32_bf16 v[24:27], v[124:127], v[92:95], v[24:27]
          v_mov_b32 v2, 1
          ds_write_b128 v30, v[24:27] offset:{PVP}
          s_mov_b64 exec, 1
          ds_add_rtn_u32 v2, v1, v2 offset:{C_PV}
          s_mov_b64 exec, -1
          s_waitcnt lgkmcnt(0)
          v_readfirstlane_b32 s54, v2
          s_cmp_lg_u32 s54, 3
          s_cbranch_scc1 L_exit""")
    for i in range(4): e(f"ds_read_b128 v[{8+4*i}:{11+4*i}], v3 offset:{PVP+1024*i}")
    for k in range(1, 4):
        e(f"s_waitcnt lgkmcnt({3-k})")
        for i in range(4): e(f"v_add_f32 v{8+i}, v{8+i}, v{8+4*k+i}")
    pack4(8, 9, 10, 11)
    publish("buffer_store_dwordx4 v[8:11], v3, s[44:47], {so} offen", True, 66)
    e(f"v_mov_b32 v2, 1\nds_write_b32 v1, v2 offset:{C_PUB}")
    stamp(5)
    e("s_branch L_exit")

    e.label("L_aw")
    e("""s_sub_u32 s6, s3, 8
         s_cmp_lt_u32 s5, 9
         s_cbranch_scc1 L_wd
         s_cmp_lt_u32 s5, 25
         s_cbranch_scc1 L_q""")
    def zero_lds():
        Lz = e.newlabel("z")
        e(f"""s_cmp_lg_u32 s6, 7
              s_cbranch_scc1 {Lz}
              v_mov_b32 v8, 0
              v_mov_b32 v9, 0
              ds_write_b64 v30, v[8:9] offset:{STAT}""")
        e.label(Lz)
    e(f"""s_mul_i32 s66, s4, 7
          s_add_u32 s66, s66, s5
          s_sub_u32 s66, s66, 25
          s_mul_i32 s67, s66, 0x5556
          s_lshr_b32 s67, s67, 16
          s_mul_i32 s54, s67, 3
          s_sub_u32 s68, s66, s54
          s_mul_i32 s69, s68, 3
          s_add_u32 s69, s69, s6""")
    srd(8, 36, 576 * 6912)
    srd(48, 34, 1152)
    blk_voff(26, 6912)
    e("""s_cmp_lt_u32 s66, 54
         s_cselect_b32 s55, s6, 7
         s_cmp_ge_u32 s55, 3
         s_cbranch_scc1 L_a_skip""")
    e(f"""s_mul_i32 s52, s69, {64*6912}
          s_lshl_b32 s54, s67, 7
          s_add_u32 s52, s52, s54
          s_lshl_b32 s54, s69, 7
          v_lshlrev_b32 v2, 1, v0
          buffer_load_ushort v25, v2, s[48:51], s54 offen""")
    blk_load(8, 26, 52, 6912, 32, P["DE"])
    aw_consts()
    start_barrier()
    if diag: e("v_writelane_b32 v31, s80, 0")
    e(f"""s_mul_i32 s52, s68, {1152*8}
          s_lshl_b32 s54, s67, 9
          s_add_u32 s52, s52, s54
          s_add_u32 s52, s52, {H1}
          s_waitcnt vmcnt(8)
          v_lshlrev_b32 v25, 16, v25""")
    silu_dup(25, 2)
    e("v_mov_b32 v23, v25\ns_waitcnt vmcnt(0)")
    stamp(1)
    blk_mfma(23, 32, True)
    blk_reduce(PARTE, C_E, 3, "L_a_done")
    e("v_mov_b32 v9, s7")
    publish("buffer_store_dwordx2 v[8:9], v30, s[44:47], {so} offen", False, 52)
    stamp(2)
    e("s_branch L_a_done")
    e.label("L_a_skip")
    aw_consts()
    zero_lds()
    start_barrier()
    if diag: e("v_writelane_b32 v31, s80, 0")
    e.label("L_a_done")
    e("s_cmp_lt_u32 s5, 27\ns_cbranch_scc1 L_gu_post")
    e("""s_mul_i32 s66, s4, 5
         s_add_u32 s66, s66, s5
         s_sub_u32 s66, s66, 27
         s_cmp_ge_u32 s66, 36
         s_cbranch_scc1 L_exit""")
    blk_voff(26, 6912)
    e(f"""s_mul_i32 s52, s6, {64*6912}
          s_lshl_b32 s67, s66, 7
          s_add_u32 s67, s67, {18*128}
          s_add_u32 s52, s52, s67
          s_add_u32 s67, s67, {8*64*6912}
          s_lshl_b32 s54, s6, 7
          v_lshlrev_b32 v2, 1, v0
          buffer_load_ushort v22, v2, s[48:51], s54 offen
          buffer_load_ushort v23, v2, s[48:51], 0 offen offset:1024""")
    if P["mod_gate"] == "K": lds_wait(1, C_KI, 1)
    elif P["mod_gate"] == "V": lds_wait(1, C_VI, 4)
    blk_load(8, 26, 52, 6912, 64, P["DMOD"])
    e("s_cmp_lg_u32 s6, 3\ns_cbranch_scc1 L_mod_1")
    e(f"s_waitcnt vmcnt({P['DMOD']-1})")
    blk_load(8, 26, 67, 6912, 32, P["DMOD"])
    e.label("L_mod_1")
    e("s_waitcnt vmcnt(0)\nv_lshlrev_b32 v22, 16, v22\nv_lshlrev_b32 v23, 16, v23")
    stamp(3)
    silu_dup(22, 2)
    silu_dup(23, 2)
    blk_mfma(22, 64, True)
    e("s_cmp_lg_u32 s6, 3\ns_cbranch_scc1 L_mod_2")
    blk_mfma(23, 32, False)
    e.label("L_mod_2")
    blk_reduce(PARTP, C_PP, 8, "L_exit")
    bf16r(8, 8)
    e(f"""s_cmp_ge_u32 s66, 27
          s_cbranch_scc1 L_final
          s_lshl_b32 s52, s66, 9
          s_add_u32 s52, s52, {HMOD}
          v_mov_b32 v9, s7""")
    publish("buffer_store_dwordx2 v[8:9], v30, s[44:47], {so} offen", False, 52)
    stamp(4)
    e("s_branch L_exit")
    e.label("L_final")
    stamp(4)
    pack_consts()
    srd(48, 16, 1152)
    e(f"""s_sub_u32 s66, s66, 27
          v_mov_b32 v24, v8
          s_lshl_b32 s54, s66, 7
          v_lshlrev_b32 v23, 1, v0
          v_add_u32 v23, s54, v23
          buffer_load_ushort v25, v23, s[48:51], 0 offen
          s_lshl_b32 s67, s66, 9
          s_add_u32 s67, s67, {HMOD}
          s_lshl_b32 s68, s66, 11
          s_add_u32 s69, s68, {H6}
          s_add_u32 s68, s68, {H4}
          v_lshlrev_b32 v27, 4, v0""")
    lds_wait(1, C_PUB, 1)
    gather(["buffer_load_dwordx2 v[20:21], v30, s[44:47], s67 offen"], [21], 30, False)
    gather([f"buffer_load_dwordx4 v[{8+4*k}:{11+4*k}], v27, s[44:47], s68 offen offset:{1024*k}" for k in range(2)], [11, 15], 27, False)
    unpack_reduce(2)
    e("v_lshlrev_b32 v25, 16, v25")
    x1_from(8, 20, 25)
    e("v_mov_b32 v25, v8")
    srd(48, 38, 1152)
    stamp(5)
    gather([f"buffer_load_dwordx4 v[{8+4*k}:{11+4*k}], v27, s[44:47], s69 offen offset:{1024*k}" for k in range(2)], [11, 15], 27, False)
    stamp(6)
    unpack_reduce(2)
    bf16r(8, 8)
    e("v_mul_f32 v8, v24, v8")
    bf16r(8, 8)
    e("""v_add_f32 v8, v25, v8
         v_cvt_pk_bf16_f32 v8, v8, v8
         buffer_store_short v8, v23, s[48:51], 0 offen
         s_cmp_lg_u32 s66, 0
         s_cbranch_scc1 L_exit
         v_mov_b32 v9, s7
         s_mov_b64 exec, 1
         buffer_store_dword v9, v1, s[44:47], 0 offen sc1
         s_mov_b64 exec, -1
         s_branch L_exit""")

    e.label("L_q")
    e("""s_sub_u32 s66, s5, 9
         s_and_b32 s67, s66, 1
         s_lshr_b32 s68, s66, 1
         s_mul_i32 s69, s67, 5
         s_add_u32 s69, s69, s6
         s_sub_u32 s89, 5, s67""")
    srd(8, 22, 576 * 8192)
    srd(48, 16, 1152)
    blk_voff(26, 8192)
    e("s_cmp_ge_u32 s6, s89\ns_cbranch_scc1 L_a_skip")
    e(f"""s_lshl_b32 s52, s69, 19
          s_lshl_b32 s54, s4, 10
          s_add_u32 s52, s52, s54
          s_lshl_b32 s54, s68, 7
          s_add_u32 s52, s52, s54
          s_lshl_b32 s54, s69, 7
          v_lshlrev_b32 v2, 1, v0
          buffer_load_ushort v25, v2, s[48:51], s54 offen""")
    for k in range(9): e(f"buffer_load_ushort v{9+k}, v2, s[48:51], 0 offen offset:{128*k}")
    blk_load(8, 26, 52, 8192, 32, P["DE"])
    aw_consts()
    start_barrier()
    if diag: e("v_writelane_b32 v31, s80, 0")
    e("s_waitcnt vmcnt(8)\nv_lshlrev_b32 v25, 16, v25")
    for k in range(9): e(f"v_lshlrev_b32 v{9+k}, 16, v{9+k}")
    e("v_add_f32 v18, v9, v10")
    for k in range(2, 9): e(f"v_add_f32 v18, v18, v{9+k}")
    red("v_add_f32", [18])
    e(f"v_mul_f32 v18, {hex(f2u(1/576))}, v18\nv_readlane_b32 s90, v18, 63\nv_mov_b32 v19, 0")
    for k in range(9): e(f"v_subrev_f32 v{9+k}, s90, v{9+k}\nv_fmac_f32 v19, v{9+k}, v{9+k}")
    red("v_add_f32", [19])
    e(f"v_mul_f32 v19, {hex(f2u(1/576))}, v19\nv_readlane_b32 s91, v19, 63\nv_mov_b32 v18, s90\nv_mov_b32 v19, s91")
    ln_finish(25, 18, 19, 24, 2)
    e(f"""s_lshl_b32 s90, s69, 9
          s_add_u32 s90, s90, {H1}
          s_add_u32 s91, s90, {576*8}
          s_add_u32 s92, s90, {1152*8}
          s_add_u32 s93, s91, {1152*8}
          s_add_u32 s94, s92, {1152*8}
          s_add_u32 s95, s93, {1152*8}
          s_lshl_b32 s52, s4, 13
          s_lshr_b32 s54, s68, 2
          s_lshl_b32 s54, s54, 12
          s_add_u32 s52, s52, s54
          s_lshl_b32 s54, s67, 11
          s_add_u32 s52, s52, s54
          s_and_b32 s54, s68, 3
          s_lshl_b32 s54, s54, 9
          s_add_u32 s52, s52, s54
          s_add_u32 s52, s52, {H2}""")
    stamp(1)
    prepoll(90, [4 + 576 * 8 * k for k in range(6)])
    gather([f"buffer_load_dwordx2 v[{8+2*k}:{9+2*k}], v30, s[44:47], s{90+k} offen" for k in range(6)], [9, 11, 13, 15, 17, 19], 30, False)
    stamp(2)
    e("""v_add_f32 v8, v8, v12
         v_add_f32 v10, v10, v14
         v_add_f32 v8, v8, v16
         v_add_f32 v10, v10, v18
         v_cvt_pk_bf16_f32 v2, v8, v10
         v_lshlrev_b32 v8, 16, v2
         v_and_b32 v10, 0xffff0000, v2
         v_add_f32 v10, 1.0, v10""")
    bf16r(10, 10)
    e("v_mul_f32 v10, v24, v10")
    bf16r(10, 10)
    e("v_add_f32 v10, v10, v8\nv_cvt_pk_bf16_f32 v23, v10, v10")
    blk_mfma(23, 32, True)
    blk_reduce(PARTE, C_E, "s89", "L_gu_post")
    e("v_mov_b32 v9, s7")
    publish("buffer_store_dwordx2 v[8:9], v30, s[44:47], {so} offen", True, 52)
    stamp(3)

    e.label("L_gu_post")
    e("""s_sub_u32 s66, s5, 9
         s_and_b32 s67, s66, 1
         s_lshr_b32 s68, s66, 1
         s_cmp_eq_u32 s67, 0
         s_cselect_b32 s12, s28, s30
         s_cselect_b32 s13, s29, s31
         s_and_b32 s13, s13, 0xffff""")
    e(f"s_mov_b32 s14, {576*9216}\ns_mov_b32 s15, 0x20000")
    srd(48, 16, 1152)
    pack_consts()
    blk_voff(26, 9216)
    e(f"""s_mul_i32 s52, s6, {64*9216}
          s_mul_i32 s54, s4, 9
          s_add_u32 s54, s54, s68
          s_lshl_b32 s54, s54, 7
          s_add_u32 s52, s52, s54
          s_lshl_b32 s54, s6, 7
          v_lshlrev_b32 v2, 1, v0
          buffer_load_ushort v25, v2, s[48:51], s54 offen
          s_lshl_b32 s90, s6, 9
          s_add_u32 s90, s90, {HMOD}
          s_add_u32 s91, s90, {576*8}
          s_add_u32 s92, s91, {576*8}
          s_lshl_b32 s93, s6, 11
          s_add_u32 s93, s93, {H4}
          s_lshl_b32 s94, s4, 1
          s_add_u32 s94, s94, s67
          s_mul_i32 s94, s94, {576*8}
          s_lshl_b32 s54, s68, 9
          s_add_u32 s94, s94, s54
          s_add_u32 s94, s94, {H5}
          v_lshlrev_b32 v27, 4, v0
          s_lshl_b32 s54, s6, 3
          v_mov_b32 v22, s54
          v_and_b32 v23, 15, v0
          v_lshlrev_b32 v23, 3, v23""")
    lds_wait(1, C_VI, 4)
    stamp(8)
    blk_load(12, 26, 52, 9216, 64, P["DP"])
    stamp(9)
    gather([f"buffer_load_dwordx2 v[{16+2*k}:{17+2*k}], v30, s[44:47], s{90+k} offen" for k in range(3)], [17, 19, 21], 30, False)
    stamp(10)
    e("v_lshlrev_b32 v25, 16, v25\nv_add_f32 v20, 1.0, v20")
    bf16r(20, 20)
    gather([f"buffer_load_dwordx4 v[{8+4*k}:{11+4*k}], v27, s[44:47], s93 offen offset:{1024*k}" for k in range(2)], [11, 15], 27, False)
    stamp(11)
    unpack_reduce(2)
    x1_from(8, 16, 25)
    e("""v_readfirstlane_b32 s54, v8
         v_subrev_f32 v10, s54, v8
         v_mul_f32 v11, v10, v10""")
    red("v_add_f32", [10, 11])
    e(f"""v_mul_f32 v12, v10, v10
          v_mov_b32 v13, s54
          v_fmac_f32 v10, 0x42800000, v13
          v_fmac_f32 v11, 0xbc800000, v12
          s_mov_b32 s58, 0
          s_mov_b32 s59, 0x80000000
          s_mov_b64 exec, s[58:59]
          ds_write_b64 v22, v[10:11] offset:{STAT}
          s_mov_b64 exec, -1
          s_waitcnt lgkmcnt(0)
          s_barrier
          ds_read_b64 v[10:11], v23 offset:{STAT}
          v_cmp_gt_u32 vcc, 72, v23
          s_waitcnt lgkmcnt(0)
          v_mov_b32 v12, v10""")
    red("v_add_f32", [12], full=False)
    e(f"""v_mul_f32 v12, {hex(f2u(1/576))}, v12
          v_fmac_f32 v10, 0xc2800000, v12
          v_cndmask_b32 v10, 0, v10, vcc
          v_mul_f32 v10, v10, v10
          v_fmac_f32 v11, 0x3c800000, v10""")
    red("v_add_f32", [11], full=False)
    e(f"v_mul_f32 v11, {hex(f2u(1/576))}, v11")
    ln_finish(8, 12, 11, 9, 2)
    e("v_mul_f32 v9, v9, v20")
    bf16r(9, 9)
    e("v_add_f32 v9, v9, v18\nv_cvt_pk_bf16_f32 v23, v9, v9")
    stamp(12)
    blk_mfma(23, 64, True)
    blk_reduce(PARTP, C_PP, 9, "L_exit")
    bf16r(8, 8)
    e("v_mov_b32 v9, s7")
    publish("buffer_store_dwordx2 v[8:9], v30, s[44:47], {so} offen", True, 94)
    stamp(13)
    e("s_branch L_exit")

    e.label("L_wd")
    srd(8, 24, 4096 * 1152)
    blk_voff(26, 1152)
    e(f"""s_lshl_b32 s52, s4, 3
          s_add_u32 s52, s52, s6
          s_mul_i32 s52, s52, {64*1152}
          s_lshl_b32 s54, s5, 7
          s_add_u32 s52, s52, s54""")
    aw_consts()
    zero_lds()
    start_barrier()
    if diag: e("v_writelane_b32 v31, s80, 0")
    blk_load(8, 26, 52, 1152, 32, P["DWO"])
    pack_consts()
    e(f"""s_lshl_b32 s90, s4, 1
          s_lshr_b32 s54, s6, 2
          s_add_u32 s90, s90, s54
          s_lshl_b32 s90, s90, 14
          s_and_b32 s54, s6, 3
          s_lshl_b32 s54, s54, 8
          s_add_u32 s90, s90, s54
          s_add_u32 s90, s90, {H3}
          s_add_u32 s91, s90, 0x1000
          s_add_u32 s92, s90, 0x2000
          s_add_u32 s93, s90, 0x3000
          v_lshrrev_b32 v25, 4, v0
          v_lshlrev_b32 v25, 10, v25
          v_and_b32 v2, 15, v0
          v_lshl_add_u32 v25, v2, 4, v25
          v_bfe_u32 v24, v0, 3, 2
          v_lshlrev_b32 v24, 6, v24
          v_lshrrev_b32 v2, 5, v0
          v_lshl_add_u32 v100, v2, 2, v24
          s_lshl_b32 s52, s5, 3
          s_add_u32 s52, s52, s4
          s_lshl_b32 s52, s52, 8
          s_add_u32 s52, s52, {H4}""")
    stamp(1)
    lds_wait(1, C_PUB, 1)
    stamp(2)
    gather([f"buffer_load_dwordx4 v[{8+4*k}:{11+4*k}], v25, s[44:47], s{90+k} offen" for k in range(4)], [11, 15, 19, 23], 25, True)
    stamp(3)
    unpack_reduce(4)
    e("v_cvt_pk_bf16_f32 v23, v8, v8\nv_mov_b32 v22, v100")
    blk_mfma(23, 32, True, vb=22, step=8)
    blk_reduce(PARTE, C_E, 8, "L_wd_down")
    e("v_lshlrev_b32 v27, 4, v0")
    publish_cols_f16p(52)
    stamp(4)
    e.label("L_wd_down")
    srd(12, 32, 4608 * 1152)
    pack_consts()
    blk_voff(26, 1152)
    e(f"""s_mul_i32 s52, s4, 9
          s_add_u32 s52, s52, s6
          s_mul_i32 s52, s52, {64*1152}
          s_lshl_b32 s54, s5, 7
          s_add_u32 s52, s52, s54""")
    blk_load(12, 26, 52, 1152, 64, P["DDN"])
    e(f"""s_mul_i32 s90, s4, {2*576*8}
          s_lshl_b32 s54, s6, 9
          s_add_u32 s90, s90, s54
          s_add_u32 s90, s90, {H5}
          s_add_u32 s91, s90, {576*8}
          s_lshl_b32 s52, s5, 3
          s_add_u32 s52, s52, s4
          s_lshl_b32 s52, s52, 8
          s_add_u32 s52, s52, {H6}
          v_mov_b32 v25, v30
          s_mov_b32 s92, {hex(f2u(0.044715))}""")
    stamp(8)
    gather([f"buffer_load_dwordx2 v[{8+2*k}:{9+2*k}], v25, s[44:47], s{90+k} offen" for k in range(2)], [9, 11], 25, True)
    stamp(9)
    KG = -2 * 0.7978845608028654 * 1.4426950408889634
    e(f"""v_mul_f32 v12, v8, v8
          v_fma_f32 v12, v12, s92, 1.0
          v_mul_f32 v12, v12, v8
          v_mul_f32 v12, {hex(f2u(KG))}, v12
          v_exp_f32 v12, v12
          v_add_f32 v12, 1.0, v12
          v_rcp_f32 v12, v12
          v_mul_f32 v12, v12, v8""")
    bf16r(12, 12)
    e("v_mul_f32 v12, v12, v10\nv_cvt_pk_bf16_f32 v23, v12, v12")
    blk_mfma(23, 64, True)
    blk_reduce(PARTP, C_PP, 9, "L_exit")
    e("v_lshlrev_b32 v27, 4, v0")
    publish_cols_f16p(52)
    stamp(10)

    e.label("L_exit")
    if diag:
        stamp(15)
        e(f"""s_getreg_b32 s54, hwreg(HW_REG_HW_ID)
              v_writelane_b32 v31, s54, 16
              s_mov_b32 exec_hi, 0
              v_lshlrev_b32 v2, 2, v0
              buffer_store_dword v31, v2, s[44:47], s96 offen""")
    e.label("L_end")
    e("s_endpgm")
    e.raw("L_code_end:")
    e.raw(f".fill ({CODE_KB}*1024 - (L_code_end-{KNAME}))/4, 4, 0xBF800000")
    e.raw("s_endpgm")
    e.raw(f""".section .rodata,"a"
.p2align 6
.amdhsa_kernel {KNAME}
  .amdhsa_next_free_vgpr 128
  .amdhsa_next_free_sgpr 102
  .amdhsa_accum_offset 128
  .amdhsa_group_segment_fixed_size 0
  .amdhsa_kernarg_size 112
  .amdhsa_user_sgpr_count 2
  .amdhsa_user_sgpr_kernarg_segment_ptr 1
  .amdhsa_system_sgpr_workgroup_id_x 1
.end_amdhsa_kernel""")
    txt = e.text()
    if diag:
        txt = txt.replace("    s_memrealtime s[80:81]\n    s_cmp_ge_u32 s3, 8",
                          f"    s_lshl_b32 s96, s2, 4\n    s_add_u32 s96, s96, s3\n    s_lshl_b32 s96, s96, 7\n    s_add_u32 s96, s96, {STAMPS}\n    s_memrealtime s[80:81]\n    s_cmp_ge_u32 s3, 8", 1)
    return txt

if __name__ == "__main__":
    kw = {}
    out = "cdna_kernels/" + NAME + ".s"
    for a in sys.argv[1:]:
        k, v = a.split("=")
        if k == "out": out = v
        else: kw[k] = eval(v)
    open(out, "w").write(gen(**kw))
```

```python
import sys, struct
from emit import Emit

NAME = "adaLN_cond__sliding_block_cached__glu_gated_geglu__decode"
KNAME = NAME + "_kernel"

def f2u(x): return struct.unpack("<I", struct.pack("<f", x))[0]

H1, HMOD, H4, H6 = 0x1000, 0x8000, 0xD000, 0x12000
H2, HML, H5, H3 = 0x20000, 0x30000, 0x38000, 0x50000
SLOW = 0x80000
STAMPS = 0x20000000
QS, PS, PVP, PARTE, PARTP, STAT, CNT, KIMG = 0, 0x800, 0x1000, 0x2000, 0x3400, 0x4800, 0x4900, 0x5000
LDS_BYTES = 0x15000
C_KI, C_P, C_VI, C_PV, C_E, C_PP, C_PUB, C_M = CNT, CNT + 16, CNT + 32, CNT + 36, CNT + 40, CNT + 44, CNT + 48, CNT + 52
MX = CNT + 64

DEF = dict(diag=False, DK=3, DV=4, DE=8, DQ=1, DWO=1, DP=2, DMOD=1, DDN=4, NFAST=64, SPINMAX=1 << 16, fast=True,
           mod_gate="K", prewarm=True, prepoll=False, sleep=1)

def gen(**kw):
    P = dict(DEF); P.update(kw)
    e = Emit()
    diag = P["diag"]
    LOG2E = f2u(1.4426950408889634)

    def stamp(k):
        if diag:
            e(f"s_memrealtime s[80:81]\ns_waitcnt lgkmcnt(0)\nv_writelane_b32 v31, s80, {k}")
    def srd(d, lo, nbytes, off=None):
        if off is None:
            e(f"s_mov_b32 s{d}, s{lo}\ns_and_b32 s{d+1}, s{lo+1}, 0xffff")
        else:
            e(f"s_add_u32 s{d}, s{lo}, {off}\ns_addc_u32 s{d+1}, s{lo+1}, 0\ns_and_b32 s{d+1}, s{d+1}, 0xffff")
        e(f"s_mov_b32 s{d+2}, {nbytes}\ns_mov_b32 s{d+3}, 0x20000")
    def bf16r(d, s):
        e(f"v_cvt_pk_bf16_f32 v{d}, v{s}, v{s}\nv_and_b32 v{d}, 0xffff0000, v{d}")
    def red(op, chains, full=True):
        steps = ["row_ror:8 row_mask:0xf", "row_ror:4 row_mask:0xf", "row_ror:2 row_mask:0xf", "row_ror:1 row_mask:0xf"]
        if full: steps += ["row_bcast:15 row_mask:0xa", "row_bcast:31 row_mask:0xc"]
        for st in steps:
            for c in chains:
                e(f"{op}_dpp v{c}, v{c}, v{c} {st} bank_mask:0xf")
    def lds_wait(vaddr, off, val, tmp=2, sleep=1):
        L = e.newlabel("lw"); D = e.newlabel("lwd")
        e(f"s_mov_b32 s53, {P['SPINMAX']*8}")
        e.label(L)
        e(f"""ds_read_b32 v{tmp}, v{vaddr} offset:{off}
              s_waitcnt lgkmcnt(0)
              v_readfirstlane_b32 s54, v{tmp}
              s_cmp_ge_u32 s54, {val}
              s_cbranch_scc1 {D}
              s_sleep {sleep}
              s_sub_u32 s53, s53, 1
              s_cmp_lg_u32 s53, 0
              s_cbranch_scc1 {L}""")
        e.label(D)
    def gather(loads, tags, vaddr, intra):
        L = e.newlabel("g"); D = e.newlabel("gd")
        e("s_mov_b32 s53, 0")
        if intra and not P["fast"]:
            e(f"v_add_u32 v{vaddr}, {SLOW}, v{vaddr}")
        e.label(L)
        for ld in loads: e(ld + " sc1")
        e("s_waitcnt vmcnt(0)")
        e(f"v_cmp_ne_u32 vcc, s7, v{tags[0]}")
        for i, t in enumerate(tags[1:]):
            pr = 56 + 2 * (i & 1)
            e(f"v_cmp_ne_u32_e64 s[{pr}:{pr+1}], s7, v{t}\ns_or_b64 vcc, vcc, s[{pr}:{pr+1}]")
        if len(tags) == 1: e("s_or_b64 vcc, vcc, vcc")
        e(f"s_cbranch_scc0 {D}")
        e("s_add_u32 s53, s53, 1")
        if intra and P["fast"]:
            e(f"s_cmp_eq_u32 s53, {P['NFAST']}\ns_cselect_b32 s54, {SLOW}, 0\nv_add_u32 v{vaddr}, s54, v{vaddr}")
        if P["sleep"]: e(f"s_sleep {P['sleep']}")
        e(f"s_cmp_lt_u32 s53, {P['SPINMAX']}\ns_cbranch_scc1 {L}")
        e.label(D)
    def prepoll(soff, offs):
        if not P["prepoll"]: return
        L = e.newlabel("pp"); D = e.newlabel("ppd")
        e(f"s_add_u32 s70, s40, s{soff}\ns_addc_u32 s71, s41, 0\ns_mov_b32 s53, 0")
        e.label(L)
        for i, o in enumerate(offs): e(f"s_load_dword s{72+i}, s[70:71], {o} glc")
        e("s_waitcnt lgkmcnt(0)")
        e("s_xor_b32 s54, s72, s7")
        for i in range(1, len(offs)): e(f"s_xor_b32 s55, s{72+i}, s7\ns_or_b32 s54, s54, s55")
        e(f"s_cmp_eq_u32 s54, 0\ns_cbranch_scc1 {D}")
        e(f"s_add_u32 s53, s53, 1\ns_cmp_lt_u32 s53, {P['NFAST']}\ns_cbranch_scc1 {L}")
        e.label(D)
    def publish(st, intra, soff):
        if intra:
            if P["fast"]: e(st.format(so=f"s{soff}"))
            e(f"s_add_u32 s54, s{soff}, {SLOW}")
            e(st.format(so="s54") + " sc1")
        else:
            e(st.format(so=f"s{soff}") + " sc1")
    def blk_load(sr, vo, so, RS, r0, D, barrier_at=False):
        for t in range(8):
            e(f"buffer_load_dwordx4 v[{r0+4*t}:{r0+4*t+3}], v{vo}, s[{sr}:{sr+3}], s{so} offen nt")
            if t < 7: e(f"s_add_u32 s{so}, s{so}, {8*RS}")
            if barrier_at and t == D - 1:
                aw_consts()
                start_barrier()
                if diag: e("v_writelane_b32 v31, s80, 0")
            if t >= D - 1 and t < 7: e(f"s_waitcnt vmcnt({D-1})")
    def blk_voff(vo, RS):
        e(f"v_lshrrev_b32 v{vo}, 3, v0\nv_mul_u32_u24 v{vo}, {RS}, v{vo}\nv_and_b32 v2, 7, v0\nv_lshl_add_u32 v{vo}, v2, 4, v{vo}")
    def masks():
        e("""v_and_b32 v2, 1, v0
             v_cmp_eq_u32 vcc, 1, v2
             v_mov_b32 v3, 0xffff
             v_mov_b32 v8, 0xffff0000
             v_cndmask_b32 v3, v3, v8, vcc
             v_bfe_u32 v2, v0, 1, 2""")
        for j in range(4):
            e(f"v_cmp_eq_u32 vcc, {j}, v2\nv_cndmask_b32 v{4+j}, 0, v3, vcc")
    def aw_consts():
        masks()
        e("""v_lshrrev_b32 v3, 3, v0
             v_lshlrev_b32 v3, 2, v3
             v_lshlrev_b32 v29, 2, v0
             v_lshlrev_b32 v30, 3, v0
             v_mov_b32 v1, 0
             v_and_b32 v2, 7, v0
             v_lshlrev_b32 v28, 5, v2
             v_and_b32 v2, 16, v0
             v_add_u32 v28, v28, v2
             v_and_b32 v2, 32, v0
             v_lshl_add_u32 v28, v2, 3, v28
             s_lshl_b32 s54, s6, 9
             v_add_u32 v28, s54, v28
             s_mov_b32 s60, 0x00ff00ff
             s_mov_b32 s61, 0xff00ff00""")
    def blk_mfma(hd, r0, first, vb=3, step=32):
        for t in range(8): e(f"ds_bpermute_b32 v{8+t}, v{vb}, v{hd} offset:{step*t}")
        for t in range(8):
            e(f"s_waitcnt lgkmcnt({7-t})")
            a = 96 + 4 * t
            for j in range(4): e(f"v_and_b32 v{a+j}, v{8+t}, v{4+j}")
            if t > 0:
                c = "0" if (first and t == 1) else "v[24:27]"
                e(f"v_mfma_f32_16x16x32_bf16 v[24:27], v[{a-4}:{a-1}], v[{r0+4*t-4}:{r0+4*t-1}], {c}")
        e(f"v_mfma_f32_16x16x32_bf16 v[24:27], v[124:127], v[{r0+28}:{r0+31}], v[24:27]")
    def blk_prep(hd, vb=3, step=32):
        for t in range(8): e(f"ds_bpermute_b32 v{8+t}, v{vb}, v{hd} offset:{step*t}")
        for t in range(8):
            e(f"s_waitcnt lgkmcnt({7-t})")
            for j in range(4): e(f"v_and_b32 v{96+4*t+j}, v{8+t}, v{4+j}")
    def blk_run(r0, nout=0):
        for t in range(8):
            e(f"s_waitcnt vmcnt({7-t+nout})")
            c = "0" if t == 0 else "v[24:27]"
            e(f"v_mfma_f32_16x16x32_bf16 v[24:27], v[{96+4*t}:{99+4*t}], v[{r0+4*t}:{r0+4*t+3}], {c}")
    def blk_reduce(part, cnt, n, notlast):
        e(f"""v_mov_b32 v2, 1
              s_mov_b64 exec, s[60:61]
              ds_write_b128 v28, v[24:27] offset:{part}
              s_mov_b64 exec, 1
              ds_add_rtn_u32 v2, v1, v2 offset:{cnt}
              s_mov_b64 exec, -1
              s_waitcnt lgkmcnt(0)
              v_readfirstlane_b32 s54, v2""")
        nmax = n if isinstance(n, int) else 5
        if isinstance(n, int): e(f"s_cmp_lg_u32 s54, {n-1}")
        else: e(f"s_add_u32 s54, s54, 1\ns_cmp_lg_u32 s54, {n}")
        e(f"s_cbranch_scc1 {notlast}")
        u = part // 256
        for w in range(nmax):
            e(f"ds_read2st64_b32 v[{8+2*w}:{9+2*w}], v29 offset0:{u+2*w} offset1:{u+2*w+1}")
        if not isinstance(n, int):
            e(f"s_cmp_eq_u32 {n}, 5\ns_cselect_b32 s54, -1, 0")
        for w in range(nmax):
            e(f"s_waitcnt lgkmcnt({nmax-1-w})")
            e(f"v_add_f32 v{8+2*w}, v{8+2*w}, v{9+2*w}")
            if not isinstance(n, int) and w == 4: e("v_and_b32 v16, s54, v16")
            if w > 0: e(f"v_add_f32 v8, v8, v{8+2*w}")
    def pack4(a, b, c, d):
        e(f"v_perm_b32 v{a}, v{a}, v{d}, s62\nv_perm_b32 v{b}, v{b}, v{d}, s63\nv_perm_b32 v{c}, v{c}, v{d}, s64\nv_mov_b32 v{a+3}, s7")
    def pack_consts():
        e("s_mov_b32 s62, 0x07060501\ns_mov_b32 s63, 0x07060502\ns_mov_b32 s64, 0x07060503\ns_mov_b32 s65, 0x0c04000c")
    def publish_cols_f16p(soff):
        e("""v_mov_b32 v10, v8
             v_permlane32_swap_b32 v8, v10
             v_mov_b32 v9, v8
             v_mov_b32 v11, v10
             v_permlane16_swap_b32 v8, v9
             v_permlane16_swap_b32 v10, v11""")
        pack4(8, 9, 10, 11)
        e("s_mov_b64 exec, 0xffff")
        publish("buffer_store_dwordx4 v[8:11], v27, s[44:47], {so} offen", False, soff)
        e("s_mov_b64 exec, -1")
    def unpack_reduce(n, base=8, scale=None):
        for k in range(n):
            b = base + 4 * k
            e(f"v_perm_b32 v{b+3}, v{b+1}, v{b}, s65\nv_lshl_or_b32 v{b+3}, v{b+2}, 24, v{b+3}")
        if scale:
            for i in range(4): e(f"v_mul_f32 v{base+i}, v{base+i}, v{scale}")
        for k in range(1, n):
            for i in range(4):
                if scale: e(f"v_fmac_f32 v{base+i}, v{base+4*k+i}, v{scale+k}")
                else: e(f"v_add_f32 v{base+i}, v{base+i}, v{base+4*k+i}")
        b = base
        e(f"""v_permlane32_swap_b32 v{b}, v{b+2}
              v_permlane32_swap_b32 v{b+1}, v{b+3}
              v_add_f32 v{b}, v{b}, v{b+2}
              v_add_f32 v{b+1}, v{b+1}, v{b+3}
              v_permlane16_swap_b32 v{b}, v{b+1}
              v_add_f32 v{b}, v{b}, v{b+1}""")
    def ln_finish(x, mean, var, out, t):
        e(f"""v_cvt_pk_bf16_f32 v{t}, v{mean}, v{var}
              v_lshlrev_b32 v{mean}, 16, v{t}
              v_and_b32 v{var}, 0xffff0000, v{t}
              v_add_f32 v{var}, {hex(f2u(1e-5))}, v{var}
              v_sub_f32 v{out}, v{x}, v{mean}
              v_cvt_pk_bf16_f32 v{t}, v{out}, v{var}
              v_and_b32 v{var}, 0xffff0000, v{t}
              v_sqrt_f32 v{var}, v{var}
              v_lshlrev_b32 v{out}, 16, v{t}""")
        bf16r(var, var)
        e(f"v_rcp_f32 v{var}, v{var}\nv_mul_f32 v{out}, v{out}, v{var}")
        bf16r(out, out)
    def silu_dup(x, t):
        e(f"""v_max_f32 v{x}, 0xc3000000, v{x}
              v_mul_f32 v{t}, {hex(f2u(-1.4426950408889634))}, v{x}
              v_exp_f32 v{t}, v{t}
              v_add_f32 v{t}, 1.0, v{t}
              v_min_f32 v{t}, 0x7e800000, v{t}
              v_rcp_f32 v8, v{t}
              v_mul_f32 v9, v{x}, v8
              v_fma_f32 v{x}, -v9, v{t}, v{x}
              v_fma_f32 v{x}, v{x}, v8, v9
              v_cvt_pk_bf16_f32 v{x}, v{x}, v{x}""")
    def x1_from(attn, ga, x):
        bf16r(attn, attn)
        e(f"v_mul_f32 v{attn}, v{ga}, v{attn}")
        bf16r(attn, attn)
        e(f"v_add_f32 v{attn}, v{x}, v{attn}")
        bf16r(attn, attn)
    def kv_soff():
        e("""s_and_b32 s52, s5, 3
             s_lshl_b32 s52, s52, 2
             s_add_u32 s52, s52, s3
             s_lshl_b32 s52, s52, 12""")
    def start_barrier():
        e("""s_waitcnt lgkmcnt(0)
             s_mul_i32 s7, s42, 1664525
             s_add_u32 s7, s7, 1013904223
             s_barrier""")

    e.raw(open("cdna_kernels/" + NAME + ".s.ref").read().split("; Override launch")[0].rstrip("\n"))
    e.raw(f"; @launch grid=(256,1,1) block=(1024,1,1) lds={LDS_BYTES}")
    e.raw('.amdgcn_target "amdgcn-amd-amdhsa--gfx950"\n.text')
    e.raw(f".globl {KNAME}\n.p2align 8\n.type {KNAME},@function\n{KNAME}:")
    e("""s_getpc_b64 s[70:71]
         v_lshlrev_b32 v2, 4, v0
         s_cmp_ge_u32 s2, 256
         s_cbranch_scc1 L_end
         global_load_dwordx4 v[124:127], v2, s[70:71] offset:-4
         s_load_dwordx16 s[16:31], s[0:1], 0
         s_load_dwordx8 s[32:39], s[0:1], 64
         s_load_dwordx2 s[40:41], s[0:1], 104
         v_lshrrev_b32 v1, 6, v0
         v_and_b32 v0, 63, v0
         s_and_b32 s4, s2, 7
         s_lshr_b32 s5, s2, 3
         v_readfirstlane_b32 s3, v1""")
    if diag: e("v_mov_b32 v31, 0")
    e("""s_lshl_b32 s52, s4, 25
         s_lshr_b32 s54, s5, 4
         s_lshl_b32 s54, s54, 24
         s_add_u32 s52, s52, s54
         s_and_b32 s54, s5, 15
         s_lshl_b32 s54, s54, 16
         s_add_u32 s52, s52, s54
         s_add_u32 s52, s52, 0xf00000
         s_waitcnt lgkmcnt(0)
         s_load_dword s42, s[40:41], 0""")
    srd(44, 40, 0x40000000)
    if diag:
        e("s_memrealtime s[80:81]")
    e("""s_cmp_ge_u32 s3, 8
         s_cbranch_scc1 L_aw
         s_cmp_ge_u32 s3, 4
         s_cbranch_scc1 L_vw""")

    srd(8, 18, 65536, "s52")
    e("""v_lshrrev_b32 v1, 4, v0
         v_and_b32 v2, 15, v0
         v_xor_b32 v3, v1, v2
         v_lshlrev_b32 v3, 4, v3
         v_lshl_add_u32 v4, v1, 8, v3
         v_xor_b32 v5, 64, v4""")
    if P.get("x_noswz"): e("v_lshlrev_b32 v4, 4, v0\nv_mov_b32 v5, v4")
    e("""
         s_lshl_b32 s54, s3, 14
         v_xor_b32 v6, 0x80, v4
         v_xor_b32 v7, 0xc0, v4""")
    e(f"s_add_u32 m0, s54, {KIMG}")
    kv_soff()
    DK = P["DK"]
    for u in range(16):
        e(f"buffer_load_dwordx4 v{4+(u&3)}, s[8:11], s52 offen offset:{(u&3)*1024} nt lds")
        if (u & 3) == 3 and u < 15: e("s_addk_i32 s52, 0x4000\ns_addk_i32 m0, 0x1000\ns_and_b32 s52, s52, 0xffff")
        if u == DK - 1:
            start_barrier()
            if diag: e("v_writelane_b32 v31, s80, 0")
        if u >= DK - 1 and u < 15: e(f"s_waitcnt vmcnt({DK-1})")
    e(f"""s_lshl_b32 s54, s3, 2
          v_mov_b32 v29, s54
          v_mov_b32 v30, 1
          ds_write_b32 v29, v30 offset:{C_KI}""")
    stamp(1)
    e(f"""s_lshl_b32 s54, s3, 14
          s_add_u32 s54, s54, {KIMG}
          v_lshl_add_u32 v4, v2, 8, v3
          v_add_u32 v4, s54, v4
          v_xor_b32 v5, 64, v4
          v_xor_b32 v6, 0x80, v4
          v_xor_b32 v7, 0xc0, v4
          s_lshl_b32 s54, s3, 9
          v_lshl_add_u32 v24, v0, 2, s54
          v_and_b32 v25, 1, v0
          v_lshlrev_b32 v25, 8, v25
          v_lshl_add_u32 v25, v1, 4, v25
          v_add_u32 v25, s54, v25
          v_and_b32 v26, 3, v0
          v_lshlrev_b32 v26, 6, v26
          v_and_b32 v27, 60, v0
          v_add3_u32 v26, v26, v27, s54
          v_lshlrev_b32 v27, 4, v0
          v_lshlrev_b32 v28, 4, v0
          s_lshl_b32 s66, s4, 1
          s_lshr_b32 s54, s5, 4
          s_add_u32 s66, s66, s54
          s_lshl_b32 s67, s66, 12
          s_add_u32 s67, s67, {H2}
          s_lshl_b32 s68, s66, 10
          s_add_u32 s68, s68, {HML}
          s_and_b32 s54, s5, 15
          s_lshl_b32 s54, s54, 2
          s_add_u32 s54, s54, s3
          s_lshl_b32 s69, s54, 4
          s_add_u32 s69, s69, s68
          s_mov_b32 s82, 0xffff0000
          s_mov_b32 s83, 0
          s_mov_b32 s84, 0
          s_mov_b32 s85, 0xffff
          s_mov_b32 s86, 0
          s_mov_b32 s87, 0xffff0000
          s_mov_b32 s88, {hex(LOG2E)}
          s_waitcnt vmcnt(0)""")
    stamp(2)
    if P.get("x_nochain"): e("s_branch L_exit")
    for t in range(4):
        for i in range(4):
            r = 32 + 16 * t + 4 * i
            e(f"ds_read_b128 v[{r}:{r+3}], v{4+i} offset:{t*4096}")
    if P["fast"]: prepoll(67, [4 + 512 * k for k in range(8)])
    gather([f"buffer_load_dwordx4 v[{8+4*k}:{11+4*k}], v27, s[44:47], s67 offen offset:{1024*k}" for k in range(4)],
           [9, 11, 13, 15, 17, 19, 21, 23], 27, True)
    stamp(3)
    e(f"""v_add_f32 v8, v8, v16
          v_add_f32 v10, v10, v18
          v_add_f32 v12, v12, v20
          v_add_f32 v14, v14, v22
          v_cvt_pk_bf16_f32 v8, v8, v10
          v_cvt_pk_bf16_f32 v12, v12, v14
          ds_write_b32 v24, v8 offset:{QS}
          ds_write_b32 v24, v12 offset:{QS+256}""")
    for i in range(4): e(f"ds_read_b128 v[{96+4*i}:{99+4*i}], v25 offset:{QS+64*i}")
    for i in range(4):
        e(f"s_waitcnt lgkmcnt({3-i})")
        for t in range(4):
            r = 32 + 16 * t + 4 * i; d = 112 + 4 * t
            c = "0" if i == 0 else f"v[{d}:{d+3}]"
            e(f"v_mfma_f32_16x16x32_bf16 v[{d}:{d+3}], v[{96+4*i}:{99+4*i}], v[{r}:{r+3}], {c}")
    for h in range(2):
        e(f"v_cndmask_b32_e64 v{8+h}, v{112+h}, v{116+h}, s[82:83]")
    for h in range(2):
        e(f"v_cndmask_b32_e64 v{8+h}, v{8+h}, v{120+h}, s[84:85]")
    for h in range(2):
        e(f"v_cndmask_b32_e64 v{8+h}, v{8+h}, v{124+h}, s[86:87]")
    SC = hex(f2u(128 ** -0.5))
    e(f"""v_cvt_pk_bf16_f32 v10, v8, v9
          v_lshlrev_b32 v8, 16, v10
          v_and_b32 v9, 0xffff0000, v10
          v_mul_f32 v8, {SC}, v8
          v_mul_f32 v9, {SC}, v9
          v_cvt_pk_bf16_f32 v10, v8, v9
          v_lshlrev_b32 v8, 16, v10
          v_and_b32 v9, 0xffff0000, v10
          v_mov_b32 v10, v8
          v_mov_b32 v11, v9""")
    red("v_max_f32", [10, 11])
    e(f"""v_lshlrev_b32 v12, 1, v29
          v_mov_b32 v1, 0
          s_mov_b32 s58, 0
          s_mov_b32 s59, 0x80000000
          s_mov_b64 exec, s[58:59]
          ds_write_b64 v12, v[10:11] offset:{MX}
          ds_add_u32 v1, v30 offset:{C_M}
          s_mov_b64 exec, -1""")
    lds_wait(1, C_M, 4, sleep=0)
    e(f"""ds_read_b128 v[16:19], v1 offset:{MX}
          ds_read_b128 v[20:23], v1 offset:{MX+16}
          s_waitcnt lgkmcnt(0)
          v_max3_f32 v10, v16, v18, v20
          v_max3_f32 v11, v17, v19, v21
          v_max_f32 v10, v10, v22
          v_max_f32 v11, v11, v23
          v_sub_f32 v13, v8, v10
          v_sub_f32 v14, v9, v11
          v_mul_f32 v13, s88, v13
          v_mul_f32 v14, s88, v14
          v_exp_f32 v13, v13
          v_exp_f32 v14, v14
          v_lshrrev_b32 v12, 16, v10
          v_cvt_pk_bf16_f32 v8, v13, v13
          v_cvt_pk_bf16_f32 v9, v14, v14
          ds_write_b32 v26, v8 offset:{PS}
          ds_write_b32 v26, v9 offset:{PS+256}
          ds_write_b32 v29, v30 offset:{C_P}
          v_or_b32 v12, v12, v11
          v_mov_b32 v15, s7""")
    stamp(4)
    red("v_add_f32", [13, 14])
    e("s_mov_b64 exec, s[58:59]")
    publish("buffer_store_dwordx4 v[12:15], v1, s[44:47], {so} offen", True, 69)
    e("s_mov_b64 exec, -1")
    stamp(6)
    e("""s_cmp_lg_u32 s3, 0
         s_cbranch_scc1 L_exit
         s_cmp_ge_u32 s5, 27
         s_cbranch_scc1 L_exit
         s_mov_b32 s6, 8""")
    aw_consts()
    e("""s_cmp_lt_u32 s5, 9
         s_cbranch_scc1 L_wd_down
         s_branch L_gu_post""")

    e.label("L_vw")
    CODE_KB = P.get("code_kb", 16)
    e("""s_sub_u32 s3, s3, 4
         v_lshlrev_b32 v27, 4, v0""")
    srd(8, 20, 65536, "s52")
    kv_soff()
    masks()
    pack_consts()
    e(f"""s_lshl_b32 s54, s3, 2
          v_mov_b32 v29, s54
          v_mov_b32 v1, 0
          v_bfe_u32 v2, v0, 3, 1
          v_lshlrev_b32 v28, 8, v2
          v_and_b32 v3, 48, v0
          v_lshl_add_u32 v28, v3, 2, v28
          s_lshl_b32 s54, s3, 9
          v_add_u32 v28, s54, v28
          v_and_b32 v3, 32, v0
          v_lshl_add_u32 v30, v2, 4, v3
          v_and_b32 v3, 7, v0
          v_lshl_add_u32 v30, v3, 1, v30
          v_bfe_u32 v3, v0, 4, 1
          v_add_u32 v30, v30, v3
          v_lshlrev_b32 v30, 4, v30
          s_lshl_b32 s54, s3, 10
          v_add_u32 v30, s54, v30
          s_lshl_b32 s66, s4, 5
          s_add_u32 s66, s66, s5
          s_lshl_b32 s66, s66, 10
          s_add_u32 s66, s66, {H3}""")
    if P["prewarm"]:
        e(f"""s_lshl_b32 s67, s4, 1
              s_lshr_b32 s54, s5, 4
              s_add_u32 s67, s67, s54
              s_lshl_b32 s67, s67, 2
              s_add_u32 s67, s67, s3
              s_lshl_b32 s67, s67, 10
              s_add_u32 s67, s67, {H2}
              buffer_load_dwordx4 v[96:99], v27, s[44:47], s67 offen sc1""")
    start_barrier()
    if diag: e("v_writelane_b32 v31, s80, 0")
    lds_wait(29, C_KI, 1)
    stamp(1)
    DV = P["DV"]
    for u in range(16):
        e(f"buffer_load_dwordx4 v[{32+4*u}:{35+4*u}], v27, s[8:11], s52 offen offset:{(u&3)*1024} nt")
        if (u & 3) == 3 and u < 15: e("s_addk_i32 s52, 0x4000\ns_and_b32 s52, s52, 0xffff")
        if u >= DV - 1 and u < 15: e(f"s_waitcnt vmcnt({DV-1})")
    e(f"""v_mov_b32 v2, 1
          s_mov_b64 exec, 1
          ds_add_u32 v1, v2 offset:{C_VI}
          s_mov_b64 exec, -1""")
    stamp(2)
    if P.get("x_nochain"):
        e("s_waitcnt vmcnt(0)"); stamp(4); e("s_branch L_exit")
    lds_wait(29, C_P, 1)
    stamp(3)
    for i in range(4): e(f"ds_read_b128 v[{8+4*i}:{11+4*i}], v28 offset:{PS+16*i}")
    for u in range(16):
        if u % 4 == 0: e(f"s_waitcnt lgkmcnt({3-u//4})")
        a = 96 + 4 * (u % 8)
        for j in range(4): e(f"v_and_b32 v{a+j}, v{8+u}, v{4+j}")
        if u > 0:
            pa = 96 + 4 * ((u - 1) % 8)
            if 15 - (u - 1) < DV: e(f"s_waitcnt vmcnt({15-(u-1)})")
            c = "0" if u == 1 else "v[24:27]"
            if u == 1: e("v_mov_b32 v3, v27")
            e(f"v_mfma_f32_16x16x32_bf16 v[24:27], v[{pa}:{pa+3}], v[{32+4*(u-1)}:{35+4*(u-1)}], {c}")
    e("s_waitcnt vmcnt(0)")
    stamp(4)
    e(f"""v_mfma_f32_16x16x32_bf16 v[24:27], v[124:127], v[92:95], v[24:27]
          v_mov_b32 v2, 1
          ds_write_b128 v30, v[24:27] offset:{PVP}
          s_mov_b64 exec, 1
          ds_add_rtn_u32 v2, v1, v2 offset:{C_PV}
          s_mov_b64 exec, -1
          s_waitcnt lgkmcnt(0)
          v_readfirstlane_b32 s54, v2
          s_cmp_lg_u32 s54, 3
          s_cbranch_scc1 L_exit""")
    for i in range(4): e(f"ds_read_b128 v[{8+4*i}:{11+4*i}], v3 offset:{PVP+1024*i}")
    for k in range(1, 4):
        e(f"s_waitcnt lgkmcnt({3-k})")
        for i in range(4): e(f"v_add_f32 v{8+i}, v{8+i}, v{8+4*k+i}")
    pack4(8, 9, 10, 11)
    publish("buffer_store_dwordx4 v[8:11], v3, s[44:47], {so} offen", True, 66)
    e(f"v_mov_b32 v2, 1\nds_write_b32 v1, v2 offset:{C_PUB}")
    stamp(5)
    e("s_branch L_exit")

    e.label("L_aw")
    e("s_sub_u32 s6, s3, 8")
    if P.get("x_noaw"):
        e("v_lshlrev_b32 v30, 3, v0\nv_mov_b32 v8, 0\nv_mov_b32 v9, 0")
        e(f"ds_write_b64 v30, v[8:9] offset:{STAT}")
        start_barrier(); e("s_branch L_exit")
    e("""s_cmp_lt_u32 s5, 9
         s_cbranch_scc1 L_wd
         s_cmp_lt_u32 s5, 25
         s_cbranch_scc1 L_q""")
    def zero_lds():
        Lz = e.newlabel("z")
        e(f"""s_cmp_lg_u32 s6, 7
              s_cbranch_scc1 {Lz}
              v_mov_b32 v8, 0
              v_mov_b32 v9, 0
              ds_write_b64 v30, v[8:9] offset:{STAT}""")
        e.label(Lz)
    e(f"""s_mul_i32 s66, s4, 7
          s_add_u32 s66, s66, s5
          s_sub_u32 s66, s66, 25
          s_mul_i32 s67, s66, 0x5556
          s_lshr_b32 s67, s67, 16
          s_mul_i32 s54, s67, 3
          s_sub_u32 s68, s66, s54
          s_mul_i32 s69, s68, 3
          s_add_u32 s69, s69, s6""")
    srd(8, 36, 576 * 6912)
    srd(48, 34, 1152)
    blk_voff(26, 6912)
    e("""s_cmp_lt_u32 s66, 54
         s_cselect_b32 s55, s6, 7
         s_cmp_ge_u32 s55, 3
         s_cbranch_scc1 L_a_skip""")
    e(f"""s_mul_i32 s52, s69, {64*6912}
          s_lshl_b32 s54, s67, 7
          s_add_u32 s52, s52, s54
          s_lshl_b32 s54, s69, 7
          v_lshlrev_b32 v2, 1, v0
          buffer_load_ushort v25, v2, s[48:51], s54 offen""")
    blk_load(8, 26, 52, 6912, 32, P["DE"])
    aw_consts()
    start_barrier()
    if diag: e("v_writelane_b32 v31, s80, 0")
    e(f"""s_mul_i32 s52, s68, {1152*8}
          s_lshl_b32 s54, s67, 9
          s_add_u32 s52, s52, s54
          s_add_u32 s52, s52, {H1}
          s_waitcnt vmcnt(8)
          v_lshlrev_b32 v25, 16, v25""")
    silu_dup(25, 2)
    blk_prep(25)
    blk_run(32)
    stamp(1)
    blk_reduce(PARTE, C_E, 3, "L_a_done")
    e("v_mov_b32 v9, s7")
    publish("buffer_store_dwordx2 v[8:9], v30, s[44:47], {so} offen", False, 52)
    stamp(2)
    e("s_branch L_a_done")
    e.label("L_a_skip")
    aw_consts()
    zero_lds()
    start_barrier()
    if diag: e("v_writelane_b32 v31, s80, 0")
    e.label("L_a_done")
    e("s_cmp_lt_u32 s5, 27\ns_cbranch_scc1 L_gu_post")
    e("""s_mul_i32 s66, s4, 5
         s_add_u32 s66, s66, s5
         s_sub_u32 s66, s66, 27
         s_cmp_ge_u32 s66, 36
         s_cbranch_scc1 L_exit""")
    blk_voff(26, 6912)
    e(f"""s_mul_i32 s52, s6, {64*6912}
          s_lshl_b32 s67, s66, 7
          s_add_u32 s67, s67, {18*128}
          s_add_u32 s52, s52, s67
          s_add_u32 s67, s67, {8*64*6912}
          s_lshl_b32 s54, s6, 7
          v_lshlrev_b32 v2, 1, v0
          buffer_load_ushort v22, v2, s[48:51], s54 offen
          buffer_load_ushort v23, v2, s[48:51], 0 offen offset:1024""")
    e(f"""s_mul_i32 s54, s6, {8*6912}
          s_add_u32 s67, s67, s54
          s_lshl_b32 s54, s6, 5
          v_add_u32 v21, s54, v3
          s_waitcnt vmcnt(0)
          v_lshlrev_b32 v22, 16, v22
          v_lshlrev_b32 v23, 16, v23""")
    silu_dup(22, 2)
    silu_dup(23, 2)
    blk_prep(22)
    e("ds_bpermute_b32 v8, v21, v23\ns_waitcnt lgkmcnt(0)")
    for j in range(4): e(f"v_and_b32 v{36+j}, v8, v{4+j}")
    if P["mod_gate"] == "K": lds_wait(1, C_KI, 1)
    elif P["mod_gate"] == "V": lds_wait(1, C_VI, 4)
    blk_load(8, 26, 52, 6912, 64, P["DMOD"])
    e(f"s_waitcnt vmcnt({P['DMOD']-1})")
    e("buffer_load_dwordx4 v[32:35], v26, s[8:11], s67 offen nt")
    blk_run(64, 1)
    e("s_waitcnt vmcnt(0)\nv_mfma_f32_16x16x32_bf16 v[24:27], v[36:39], v[32:35], v[24:27]")
    stamp(3)
    blk_reduce(PARTP, C_PP, 8, "L_exit")
    bf16r(8, 8)
    e(f"""s_cmp_ge_u32 s66, 27
          s_cbranch_scc1 L_final
          s_lshl_b32 s52, s66, 9
          s_add_u32 s52, s52, {HMOD}
          v_mov_b32 v9, s7""")
    publish("buffer_store_dwordx2 v[8:9], v30, s[44:47], {so} offen", False, 52)
    stamp(4)
    e("s_branch L_exit")
    e.label("L_final")
    stamp(4)
    if P.get("x_nochain"): e("s_branch L_exit")
    pack_consts()
    srd(48, 16, 1152)
    e(f"""s_sub_u32 s66, s66, 27
          v_mov_b32 v24, v8
          s_lshl_b32 s54, s66, 7
          v_lshlrev_b32 v23, 1, v0
          v_add_u32 v23, s54, v23
          buffer_load_ushort v25, v23, s[48:51], 0 offen
          s_lshl_b32 s67, s66, 9
          s_add_u32 s67, s67, {HMOD}
          s_lshl_b32 s68, s66, 11
          s_add_u32 s69, s68, {H6}
          s_add_u32 s68, s68, {H4}
          v_lshlrev_b32 v27, 4, v0""")
    lds_wait(1, C_PUB, 1)
    gather(["buffer_load_dwordx2 v[20:21], v30, s[44:47], s67 offen"], [21], 30, False)
    gather([f"buffer_load_dwordx4 v[{8+4*k}:{11+4*k}], v27, s[44:47], s68 offen offset:{1024*k}" for k in range(2)], [11, 15], 27, False)
    unpack_reduce(2)
    e("v_lshlrev_b32 v25, 16, v25")
    x1_from(8, 20, 25)
    e("v_mov_b32 v25, v8")
    srd(48, 38, 1152)
    stamp(5)
    gather([f"buffer_load_dwordx4 v[{8+4*k}:{11+4*k}], v27, s[44:47], s69 offen offset:{1024*k}" for k in range(2)], [11, 15], 27, False)
    stamp(6)
    unpack_reduce(2)
    bf16r(8, 8)
    e("v_mul_f32 v8, v24, v8")
    bf16r(8, 8)
    e("""v_add_f32 v8, v25, v8
         v_cvt_pk_bf16_f32 v8, v8, v8
         buffer_store_short v8, v23, s[48:51], 0 offen
         s_cmp_lg_u32 s66, 0
         s_cbranch_scc1 L_exit
         v_mov_b32 v9, s7
         s_mov_b64 exec, 1
         buffer_store_dword v9, v1, s[44:47], 0 offen sc1
         s_mov_b64 exec, -1
         s_branch L_exit""")

    e.label("L_q")
    e("""s_sub_u32 s66, s5, 9
         s_and_b32 s67, s66, 1
         s_lshr_b32 s68, s66, 1
         s_mul_i32 s69, s67, 5
         s_add_u32 s69, s69, s6
         s_sub_u32 s89, 5, s67""")
    srd(8, 22, 576 * 8192)
    srd(48, 16, 1152)
    blk_voff(26, 8192)
    e("s_cmp_ge_u32 s6, s89\ns_cbranch_scc1 L_a_skip")
    e(f"""s_lshl_b32 s52, s69, 19
          s_lshl_b32 s54, s4, 10
          s_add_u32 s52, s52, s54
          s_lshl_b32 s54, s68, 7
          s_add_u32 s52, s52, s54
          s_lshl_b32 s54, s69, 7
          v_lshlrev_b32 v2, 1, v0
          buffer_load_ushort v25, v2, s[48:51], s54 offen""")
    for k in range(9): e(f"buffer_load_ushort v{9+k}, v2, s[48:51], 0 offen offset:{128*k}")
    blk_load(8, 26, 52, 8192, 32, P["DQ"], barrier_at=True)
    e("s_waitcnt vmcnt(8)\nv_lshlrev_b32 v25, 16, v25")
    for k in range(9): e(f"v_lshlrev_b32 v{9+k}, 16, v{9+k}")
    e("v_add_f32 v18, v9, v10")
    for k in range(2, 9): e(f"v_add_f32 v18, v18, v{9+k}")
    red("v_add_f32", [18])
    e(f"v_mul_f32 v18, {hex(f2u(1/576))}, v18\nv_readlane_b32 s90, v18, 63\nv_mov_b32 v19, 0")
    for k in range(9): e(f"v_subrev_f32 v{9+k}, s90, v{9+k}\nv_fmac_f32 v19, v{9+k}, v{9+k}")
    red("v_add_f32", [19])
    e(f"v_mul_f32 v19, {hex(f2u(1/576))}, v19\nv_readlane_b32 s91, v19, 63\nv_mov_b32 v18, s90\nv_mov_b32 v19, s91")
    ln_finish(25, 18, 19, 24, 2)
    e(f"""s_lshl_b32 s90, s69, 9
          s_add_u32 s90, s90, {H1}
          s_add_u32 s91, s90, {576*8}
          s_add_u32 s92, s90, {1152*8}
          s_add_u32 s93, s91, {1152*8}
          s_add_u32 s94, s92, {1152*8}
          s_add_u32 s95, s93, {1152*8}
          s_lshl_b32 s52, s4, 13
          s_lshr_b32 s54, s68, 2
          s_lshl_b32 s54, s54, 12
          s_add_u32 s52, s52, s54
          s_lshl_b32 s54, s67, 11
          s_add_u32 s52, s52, s54
          s_and_b32 s54, s68, 3
          s_lshl_b32 s54, s54, 9
          s_add_u32 s52, s52, s54
          s_add_u32 s52, s52, {H2}""")
    stamp(1)
    if P.get("x_nochain"):
        e("s_waitcnt vmcnt(0)"); stamp(2); e("s_branch L_gu_post")
    prepoll(90, [4 + 576 * 8 * k for k in range(6)])
    gather([f"buffer_load_dwordx2 v[{8+2*k}:{9+2*k}], v30, s[44:47], s{90+k} offen" for k in range(6)], [9, 11, 13, 15, 17, 19], 30, False)
    stamp(2)
    e("""v_add_f32 v8, v8, v12
         v_add_f32 v10, v10, v14
         v_add_f32 v8, v8, v16
         v_add_f32 v10, v10, v18
         v_cvt_pk_bf16_f32 v2, v8, v10
         v_lshlrev_b32 v8, 16, v2
         v_and_b32 v10, 0xffff0000, v2
         v_add_f32 v10, 1.0, v10""")
    bf16r(10, 10)
    e("v_mul_f32 v10, v24, v10")
    bf16r(10, 10)
    e("v_add_f32 v10, v10, v8\nv_cvt_pk_bf16_f32 v23, v10, v10")
    blk_mfma(23, 32, True)
    blk_reduce(PARTE, C_E, "s89", "L_gu_post")
    e("v_mov_b32 v9, s7")
    publish("buffer_store_dwordx2 v[8:9], v30, s[44:47], {so} offen", True, 52)
    stamp(3)

    e.label("L_gu_post")
    e("""s_sub_u32 s66, s5, 9
         s_and_b32 s67, s66, 1
         s_lshr_b32 s68, s66, 1
         s_cmp_eq_u32 s67, 0
         s_cselect_b32 s12, s28, s30
         s_cselect_b32 s13, s29, s31
         s_and_b32 s13, s13, 0xffff""")
    e(f"s_mov_b32 s14, {576*9216}\ns_mov_b32 s15, 0x20000")
    srd(48, 16, 1152)
    pack_consts()
    blk_voff(26, 9216)
    e(f"""s_mul_i32 s52, s6, {64*9216}
          s_mul_i32 s54, s4, 9
          s_add_u32 s54, s54, s68
          s_lshl_b32 s54, s54, 7
          s_add_u32 s52, s52, s54
          s_lshl_b32 s54, s6, 7
          v_lshlrev_b32 v2, 1, v0
          buffer_load_ushort v25, v2, s[48:51], s54 offen
          s_lshl_b32 s90, s6, 9
          s_add_u32 s90, s90, {HMOD}
          s_add_u32 s91, s90, {576*8}
          s_add_u32 s92, s91, {576*8}
          s_lshl_b32 s93, s6, 11
          s_add_u32 s93, s93, {H4}
          s_lshl_b32 s94, s4, 1
          s_add_u32 s94, s94, s67
          s_mul_i32 s94, s94, {576*8}
          s_lshl_b32 s54, s68, 9
          s_add_u32 s94, s94, s54
          s_add_u32 s94, s94, {H5}
          v_lshlrev_b32 v27, 4, v0
          s_lshl_b32 s54, s6, 3
          v_mov_b32 v22, s54
          v_and_b32 v23, 15, v0
          v_lshlrev_b32 v23, 3, v23""")
    lds_wait(1, C_VI, 4)
    stamp(8)
    blk_load(12, 26, 52, 9216, 64, P["DP"])
    stamp(9)
    if P.get("x_nochain"):
        e("s_waitcnt vmcnt(0)"); stamp(10); e("s_branch L_exit")
    gather([f"buffer_load_dwordx2 v[{16+2*k}:{17+2*k}], v30, s[44:47], s{90+k} offen" for k in range(3)], [17, 19, 21], 30, False)
    stamp(10)
    e("v_lshlrev_b32 v25, 16, v25\nv_add_f32 v20, 1.0, v20")
    bf16r(20, 20)
    gather([f"buffer_load_dwordx4 v[{8+4*k}:{11+4*k}], v27, s[44:47], s93 offen offset:{1024*k}" for k in range(2)], [11, 15], 27, False)
    stamp(11)
    unpack_reduce(2)
    x1_from(8, 16, 25)
    e("""v_readfirstlane_b32 s54, v8
         v_subrev_f32 v10, s54, v8
         v_mul_f32 v11, v10, v10""")
    red("v_add_f32", [10, 11])
    e(f"""v_mul_f32 v12, v10, v10
          v_mov_b32 v13, s54
          v_fmac_f32 v10, 0x42800000, v13
          v_fmac_f32 v11, 0xbc800000, v12
          s_mov_b32 s58, 0
          s_mov_b32 s59, 0x80000000
          s_mov_b64 exec, s[58:59]
          ds_write_b64 v22, v[10:11] offset:{STAT}
          s_mov_b64 exec, -1
          s_waitcnt lgkmcnt(0)
          s_barrier
          ds_read_b64 v[10:11], v23 offset:{STAT}
          v_cmp_gt_u32 vcc, 72, v23
          s_waitcnt lgkmcnt(0)
          v_mov_b32 v12, v10""")
    red("v_add_f32", [12], full=False)
    e(f"""v_mul_f32 v12, {hex(f2u(1/576))}, v12
          v_fmac_f32 v10, 0xc2800000, v12
          v_cndmask_b32 v10, 0, v10, vcc
          v_mul_f32 v10, v10, v10
          v_fmac_f32 v11, 0x3c800000, v10""")
    red("v_add_f32", [11], full=False)
    e(f"v_mul_f32 v11, {hex(f2u(1/576))}, v11")
    ln_finish(8, 12, 11, 9, 2)
    e("v_mul_f32 v9, v9, v20")
    bf16r(9, 9)
    e("v_add_f32 v9, v9, v18\nv_cvt_pk_bf16_f32 v23, v9, v9")
    stamp(12)
    blk_mfma(23, 64, True)
    blk_reduce(PARTP, C_PP, 9, "L_exit")
    bf16r(8, 8)
    e("v_mov_b32 v9, s7")
    publish("buffer_store_dwordx2 v[8:9], v30, s[44:47], {so} offen", True, 94)
    stamp(13)
    e("s_branch L_exit")

    e.label("L_wd")
    srd(8, 24, 4096 * 1152)
    blk_voff(26, 1152)
    e(f"""s_lshl_b32 s52, s4, 3
          s_add_u32 s52, s52, s6
          s_mul_i32 s52, s52, {64*1152}
          s_lshl_b32 s54, s5, 7
          s_add_u32 s52, s52, s54""")
    aw_consts()
    zero_lds()
    start_barrier()
    if diag: e("v_writelane_b32 v31, s80, 0")
    blk_load(8, 26, 52, 1152, 32, P["DWO"])
    pack_consts()
    e(f"""s_lshl_b32 s90, s4, 1
          s_lshr_b32 s54, s6, 2
          s_add_u32 s90, s90, s54
          s_lshl_b32 s90, s90, 14
          s_and_b32 s54, s6, 3
          s_lshl_b32 s54, s54, 8
          s_add_u32 s90, s90, s54
          s_add_u32 s90, s90, {H3}
          s_add_u32 s91, s90, 0x1000
          s_add_u32 s92, s90, 0x2000
          s_add_u32 s93, s90, 0x3000
          v_lshrrev_b32 v25, 4, v0
          v_lshlrev_b32 v25, 10, v25
          v_and_b32 v2, 15, v0
          v_lshl_add_u32 v25, v2, 4, v25
          v_bfe_u32 v24, v0, 3, 2
          v_lshlrev_b32 v24, 6, v24
          v_lshrrev_b32 v2, 5, v0
          v_lshl_add_u32 v100, v2, 2, v24
          s_lshl_b32 s52, s5, 3
          s_add_u32 s52, s52, s4
          s_lshl_b32 s52, s52, 8
          s_add_u32 s52, s52, {H4}""")
    stamp(1)
    if P.get("x_nochain"):
        lds_wait(1, C_VI, 4); e("s_branch L_wd_down")
    if P["prewarm"]:
        for k in range(4): e(f"buffer_load_dwordx4 v[{8+4*k}:{11+4*k}], v25, s[44:47], s{90+k} offen sc1")
    e(f"""s_lshl_b32 s94, s4, 1
          s_lshr_b32 s54, s6, 2
          s_add_u32 s94, s94, s54
          s_lshl_b32 s94, s94, 10
          s_add_u32 s94, s94, {HML}
          v_lshlrev_b32 v27, 4, v0
          s_mov_b32 s88, {hex(LOG2E)}
          s_bitcmp1_b32 s6, 1
          s_cselect_b32 s95, 0, 16
          s_cselect_b64 s[58:59], -1, 0
          v_and_b32 v24, 48, v0""")
    if P["prewarm"]:
        e(f"""buffer_load_dwordx4 v[16:19], v27, s[44:47], s94 offen sc1
              s_mul_i32 s54, s4, {2*576*8}
              s_mul_i32 s55, s6, 1152
              s_add_u32 s54, s54, s55
              s_add_u32 s54, s54, {H5}
              buffer_load_dwordx4 v[16:19], v27, s[44:47], s54 offen sc1
              buffer_load_dwordx4 v[16:19], v27, s[44:47], s54 offen offset:128 sc1""")
    lds_wait(1, C_P, 1)
    gather(["buffer_load_dwordx4 v[16:19], v27, s[44:47], s94 offen"], [19], 27, True)
    e("""v_lshlrev_b32 v16, s95, v16
         v_and_b32 v16, 0xffff0000, v16
         v_cndmask_b32_e64 v17, v17, v18, s[58:59]
         v_mov_b32 v10, v16""")
    red("v_max_f32", [10])
    e("""v_readlane_b32 s54, v10, 63
         v_subrev_f32 v16, s54, v16
         v_mul_f32 v16, s88, v16
         v_exp_f32 v16, v16
         v_mul_f32 v17, v17, v16""")
    red("v_add_f32", [17])
    e("""v_rcp_f32 v17, v17
         v_readlane_b32 s54, v17, 63
         v_mul_f32 v16, s54, v16""")
    for k in range(4): e(f"ds_bpermute_b32 v{104+k}, v24, v16 offset:{64*k}")
    stamp(5)
    lds_wait(1, C_PUB, 1)
    stamp(2)
    gather([f"buffer_load_dwordx4 v[{8+4*k}:{11+4*k}], v25, s[44:47], s{90+k} offen" for k in range(4)], [11, 15, 19, 23], 25, True)
    stamp(3)
    unpack_reduce(4, scale=104)
    e("v_cvt_pk_bf16_f32 v23, v8, v8\nv_mov_b32 v22, v100")
    blk_mfma(23, 32, True, vb=22, step=8)
    blk_reduce(PARTE, C_E, 8, "L_wd_down")
    e("v_lshlrev_b32 v27, 4, v0")
    publish_cols_f16p(52)
    stamp(4)
    e.label("L_wd_down")
    srd(12, 32, 4608 * 1152)
    pack_consts()
    blk_voff(26, 1152)
    e(f"""s_mul_i32 s52, s4, 9
          s_add_u32 s52, s52, s6
          s_mul_i32 s52, s52, {64*1152}
          s_lshl_b32 s54, s5, 7
          s_add_u32 s52, s52, s54""")
    blk_load(12, 26, 52, 1152, 64, P["DDN"])
    e(f"""s_mul_i32 s90, s4, {2*576*8}
          s_lshl_b32 s54, s6, 9
          s_add_u32 s90, s90, s54
          s_add_u32 s90, s90, {H5}
          s_add_u32 s91, s90, {576*8}
          s_lshl_b32 s52, s5, 3
          s_add_u32 s52, s52, s4
          s_lshl_b32 s52, s52, 8
          s_add_u32 s52, s52, {H6}
          v_mov_b32 v25, v30
          s_mov_b32 s92, {hex(f2u(0.044715))}""")
    stamp(8)
    if P.get("x_nochain"):
        e("s_waitcnt vmcnt(0)"); stamp(9); e("s_branch L_exit")
    gather([f"buffer_load_dwordx2 v[{8+2*k}:{9+2*k}], v25, s[44:47], s{90+k} offen" for k in range(2)], [9, 11], 25, True)
    stamp(9)
    KG = -2 * 0.7978845608028654 * 1.4426950408889634
    e(f"""v_mul_f32 v12, v8, v8
          v_fma_f32 v12, v12, s92, 1.0
          v_mul_f32 v12, v12, v8
          v_mul_f32 v12, {hex(f2u(KG))}, v12
          v_exp_f32 v12, v12
          v_add_f32 v12, 1.0, v12
          v_rcp_f32 v12, v12
          v_mul_f32 v12, v12, v8""")
    bf16r(12, 12)
    e("v_mul_f32 v12, v12, v10\nv_cvt_pk_bf16_f32 v23, v12, v12")
    blk_mfma(23, 64, True)
    blk_reduce(PARTP, C_PP, 9, "L_exit")
    e("v_lshlrev_b32 v27, 4, v0")
    publish_cols_f16p(52)
    stamp(10)

    e.label("L_exit")
    if diag:
        stamp(15)
        e(f"""s_getreg_b32 s54, hwreg(HW_REG_HW_ID)
              v_writelane_b32 v31, s54, 16
              s_mov_b32 exec_hi, 0
              v_lshlrev_b32 v2, 2, v0
              buffer_store_dword v31, v2, s[44:47], s96 offen""")
    e.label("L_end")
    e("s_endpgm")
    e.raw("L_code_end:")
    e.raw(f".fill ({CODE_KB}*1024 - (L_code_end-{KNAME}))/4, 4, 0xBF800000")
    e.raw("s_endpgm")
    e.raw(f""".section .rodata,"a"
.p2align 6
.amdhsa_kernel {KNAME}
  .amdhsa_next_free_vgpr 128
  .amdhsa_next_free_sgpr 102
  .amdhsa_accum_offset 128
  .amdhsa_group_segment_fixed_size 0
  .amdhsa_kernarg_size 112
  .amdhsa_user_sgpr_count 2
  .amdhsa_user_sgpr_kernarg_segment_ptr 1
  .amdhsa_system_sgpr_workgroup_id_x 1
.end_amdhsa_kernel""")
    txt = e.text()
    if diag:
        txt = txt.replace("    s_memrealtime s[80:81]\n    s_cmp_ge_u32 s3, 8",
                          f"    s_lshl_b32 s96, s2, 4\n    s_add_u32 s96, s96, s3\n    s_lshl_b32 s96, s96, 7\n    s_add_u32 s96, s96, {STAMPS}\n    s_memrealtime s[80:81]\n    s_cmp_ge_u32 s3, 8", 1)
    return txt

if __name__ == "__main__":
    kw = {}
    out = "cdna_kernels/" + NAME + ".s"
    for a in sys.argv[1:]:
        k, v = a.split("=")
        if k == "out": out = v
        else: kw[k] = eval(v)
    open(out, "w").write(gen(**kw))
```

```python
import sys, struct
from emit import Emit

NAME = "adaLN_cond__sliding_block_cached__glu_gated_geglu__decode"
KNAME = NAME + "_kernel"

def f2u(x): return struct.unpack("<I", struct.pack("<f", x))[0]

H1, HMOD, H4, H6 = 0x1000, 0x8000, 0xD000, 0x12000
H2, HML, H5, H3 = 0x20000, 0x30000, 0x38000, 0x50000
SLOW = 0x80000
STAMPS = 0x20000000
QS, PS, PVP, PARTE, PARTP, STAT, CNT, KIMG = 0, 0x800, 0x1000, 0x2000, 0x3400, 0x4800, 0x4900, 0x5000
LDS_BYTES = 0x15000
C_KI, C_P, C_VI, C_PV, C_E, C_PP, C_PUB, C_M = CNT, CNT + 16, CNT + 32, CNT + 36, CNT + 40, CNT + 44, CNT + 48, CNT + 52
MX = CNT + 64

DEF = dict(diag=False, DK=3, DV=4, DE=8, DQ=1, DWO=1, DP=2, DMOD=1, DDN=4, NFAST=64, SPINMAX=1 << 16, fast=True,
           mod_gate="K", prewarm=True, prepoll=False, sleep=1)

def gen(**kw):
    P = dict(DEF); P.update(kw)
    e = Emit()
    diag = P["diag"]
    LOG2E = f2u(1.4426950408889634)

    def stamp(k):
        if diag:
            e(f"s_memrealtime s[80:81]\ns_waitcnt lgkmcnt(0)\nv_writelane_b32 v31, s80, {k}")
    def srd(d, lo, nbytes, off=None):
        if off is None:
            e(f"s_mov_b32 s{d}, s{lo}\ns_and_b32 s{d+1}, s{lo+1}, 0xffff")
        else:
            e(f"s_add_u32 s{d}, s{lo}, {off}\ns_addc_u32 s{d+1}, s{lo+1}, 0\ns_and_b32 s{d+1}, s{d+1}, 0xffff")
        e(f"s_mov_b32 s{d+2}, {nbytes}\ns_mov_b32 s{d+3}, 0x20000")
    def bf16r(d, s):
        e(f"v_cvt_pk_bf16_f32 v{d}, v{s}, v{s}\nv_and_b32 v{d}, 0xffff0000, v{d}")
    def red(op, chains, full=True):
        steps = ["row_ror:8 row_mask:0xf", "row_ror:4 row_mask:0xf", "row_ror:2 row_mask:0xf", "row_ror:1 row_mask:0xf"]
        if full: steps += ["row_bcast:15 row_mask:0xa", "row_bcast:31 row_mask:0xc"]
        for st in steps:
            for c in chains:
                e(f"{op}_dpp v{c}, v{c}, v{c} {st} bank_mask:0xf")
    def lds_wait(vaddr, off, val, tmp=2, sleep=1):
        L = e.newlabel("lw"); D = e.newlabel("lwd")
        e(f"s_mov_b32 s53, {P['SPINMAX']*8}")
        e.label(L)
        e(f"""ds_read_b32 v{tmp}, v{vaddr} offset:{off}
              s_waitcnt lgkmcnt(0)
              v_readfirstlane_b32 s54, v{tmp}
              s_cmp_ge_u32 s54, {val}
              s_cbranch_scc1 {D}
              s_sleep {sleep}
              s_sub_u32 s53, s53, 1
              s_cmp_lg_u32 s53, 0
              s_cbranch_scc1 {L}""")
        e.label(D)
    def gather(loads, tags, vaddr, intra):
        L = e.newlabel("g"); D = e.newlabel("gd")
        e("s_mov_b32 s53, 0")
        if intra and not P["fast"]:
            e(f"v_add_u32 v{vaddr}, {SLOW}, v{vaddr}")
        e.label(L)
        for ld in loads: e(ld + " sc1")
        e("s_waitcnt vmcnt(0)")
        e(f"v_cmp_ne_u32 vcc, s7, v{tags[0]}")
        for i, t in enumerate(tags[1:]):
            pr = 56 + 2 * (i & 1)
            e(f"v_cmp_ne_u32_e64 s[{pr}:{pr+1}], s7, v{t}\ns_or_b64 vcc, vcc, s[{pr}:{pr+1}]")
        if len(tags) == 1: e("s_or_b64 vcc, vcc, vcc")
        e(f"s_cbranch_scc0 {D}")
        e("s_add_u32 s53, s53, 1")
        if intra and P["fast"]:
            e(f"s_cmp_eq_u32 s53, {P['NFAST']}\ns_cselect_b32 s54, {SLOW}, 0\nv_add_u32 v{vaddr}, s54, v{vaddr}")
        if P["sleep"]: e(f"s_sleep {P['sleep']}")
        e(f"s_cmp_lt_u32 s53, {P['SPINMAX']}\ns_cbranch_scc1 {L}")
        e.label(D)
    def prepoll(soff, offs):
        if not P["prepoll"]: return
        L = e.newlabel("pp"); D = e.newlabel("ppd")
        e(f"s_add_u32 s70, s40, s{soff}\ns_addc_u32 s71, s41, 0\ns_mov_b32 s53, 0")
        e.label(L)
        for i, o in enumerate(offs): e(f"s_load_dword s{72+i}, s[70:71], {o} glc")
        e("s_waitcnt lgkmcnt(0)")
        e("s_xor_b32 s54, s72, s7")
        for i in range(1, len(offs)): e(f"s_xor_b32 s55, s{72+i}, s7\ns_or_b32 s54, s54, s55")
        e(f"s_cmp_eq_u32 s54, 0\ns_cbranch_scc1 {D}")
        e(f"s_add_u32 s53, s53, 1\ns_cmp_lt_u32 s53, {P['NFAST']}\ns_cbranch_scc1 {L}")
        e.label(D)
    def publish(st, intra, soff):
        if intra:
            if P["fast"]: e(st.format(so=f"s{soff}"))
            e(f"s_add_u32 s54, s{soff}, {SLOW}")
            e(st.format(so="s54") + " sc1")
        else:
            e(st.format(so=f"s{soff}") + " sc1")
    def blk_load(sr, vo, so, RS, r0, D, barrier_at=False):
        for t in range(8):
            e(f"buffer_load_dwordx4 v[{r0+4*t}:{r0+4*t+3}], v{vo}, s[{sr}:{sr+3}], s{so} offen nt")
            if t < 7: e(f"s_add_u32 s{so}, s{so}, {8*RS}")
            if barrier_at and t == D - 1:
                aw_consts()
                start_barrier()
                if diag: e("v_writelane_b32 v31, s80, 0")
            if t >= D - 1 and t < 7: e(f"s_waitcnt vmcnt({D-1})")
    def blk_voff(vo, RS):
        e(f"v_lshrrev_b32 v{vo}, 3, v0\nv_mul_u32_u24 v{vo}, {RS}, v{vo}\nv_and_b32 v2, 7, v0\nv_lshl_add_u32 v{vo}, v2, 4, v{vo}")
    def masks():
        e("""v_and_b32 v2, 1, v0
             v_cmp_eq_u32 vcc, 1, v2
             v_mov_b32 v3, 0xffff
             v_mov_b32 v8, 0xffff0000
             v_cndmask_b32 v3, v3, v8, vcc
             v_bfe_u32 v2, v0, 1, 2""")
        for j in range(4):
            e(f"v_cmp_eq_u32 vcc, {j}, v2\nv_cndmask_b32 v{4+j}, 0, v3, vcc")
    def aw_consts():
        masks()
        e("""v_lshrrev_b32 v3, 3, v0
             v_lshlrev_b32 v3, 2, v3
             v_lshlrev_b32 v29, 2, v0
             v_lshlrev_b32 v30, 3, v0
             v_mov_b32 v1, 0
             v_and_b32 v2, 7, v0
             v_lshlrev_b32 v28, 5, v2
             v_and_b32 v2, 16, v0
             v_add_u32 v28, v28, v2
             v_and_b32 v2, 32, v0
             v_lshl_add_u32 v28, v2, 3, v28
             s_lshl_b32 s54, s6, 9
             v_add_u32 v28, s54, v28
             s_mov_b32 s60, 0x00ff00ff
             s_mov_b32 s61, 0xff00ff00""")
    def blk_mfma(hd, r0, first, vb=3, step=32):
        for t in range(8): e(f"ds_bpermute_b32 v{8+t}, v{vb}, v{hd} offset:{step*t}")
        for t in range(8):
            e(f"s_waitcnt lgkmcnt({7-t})")
            a = 96 + 4 * t
            for j in range(4): e(f"v_and_b32 v{a+j}, v{8+t}, v{4+j}")
            if t > 0:
                c = "0" if (first and t == 1) else "v[24:27]"
                e(f"v_mfma_f32_16x16x32_bf16 v[24:27], v[{a-4}:{a-1}], v[{r0+4*t-4}:{r0+4*t-1}], {c}")
        e(f"v_mfma_f32_16x16x32_bf16 v[24:27], v[124:127], v[{r0+28}:{r0+31}], v[24:27]")
    def blk_prep(hd, vb=3, step=32):
        for t in range(8): e(f"ds_bpermute_b32 v{8+t}, v{vb}, v{hd} offset:{step*t}")
        for t in range(8):
            e(f"s_waitcnt lgkmcnt({7-t})")
            for j in range(4): e(f"v_and_b32 v{96+4*t+j}, v{8+t}, v{4+j}")
    def blk_run(r0, nout=0):
        for t in range(8):
            e(f"s_waitcnt vmcnt({7-t+nout})")
            c = "0" if t == 0 else "v[24:27]"
            e(f"v_mfma_f32_16x16x32_bf16 v[24:27], v[{96+4*t}:{99+4*t}], v[{r0+4*t}:{r0+4*t+3}], {c}")
    def blk_reduce(part, cnt, n, notlast):
        e(f"""v_mov_b32 v2, 1
              s_mov_b64 exec, s[60:61]
              ds_write_b128 v28, v[24:27] offset:{part}
              s_mov_b64 exec, 1
              ds_add_rtn_u32 v2, v1, v2 offset:{cnt}
              s_mov_b64 exec, -1
              s_waitcnt lgkmcnt(0)
              v_readfirstlane_b32 s54, v2""")
        nmax = n if isinstance(n, int) else 5
        if isinstance(n, int): e(f"s_cmp_lg_u32 s54, {n-1}")
        else: e(f"s_add_u32 s54, s54, 1\ns_cmp_lg_u32 s54, {n}")
        e(f"s_cbranch_scc1 {notlast}")
        u = part // 256
        for w in range(nmax):
            e(f"ds_read2st64_b32 v[{8+2*w}:{9+2*w}], v29 offset0:{u+2*w} offset1:{u+2*w+1}")
        if not isinstance(n, int):
            e(f"s_cmp_eq_u32 {n}, 5\ns_cselect_b32 s54, -1, 0")
        for w in range(nmax):
            e(f"s_waitcnt lgkmcnt({nmax-1-w})")
            e(f"v_add_f32 v{8+2*w}, v{8+2*w}, v{9+2*w}")
            if not isinstance(n, int) and w == 4: e("v_and_b32 v16, s54, v16")
            if w > 0: e(f"v_add_f32 v8, v8, v{8+2*w}")
    def pack4(a, b, c, d):
        e(f"v_perm_b32 v{a}, v{a}, v{d}, s62\nv_perm_b32 v{b}, v{b}, v{d}, s63\nv_perm_b32 v{c}, v{c}, v{d}, s64\nv_mov_b32 v{a+3}, s7")
    def pack_consts():
        e("s_mov_b32 s62, 0x07060501\ns_mov_b32 s63, 0x07060502\ns_mov_b32 s64, 0x07060503\ns_mov_b32 s65, 0x0c04000c")
    def publish_cols_f16p(soff):
        e("""v_mov_b32 v10, v8
             v_permlane32_swap_b32 v8, v10
             v_mov_b32 v9, v8
             v_mov_b32 v11, v10
             v_permlane16_swap_b32 v8, v9
             v_permlane16_swap_b32 v10, v11""")
        pack4(8, 9, 10, 11)
        e("s_mov_b64 exec, 0xffff")
        publish("buffer_store_dwordx4 v[8:11], v27, s[44:47], {so} offen", False, soff)
        e("s_mov_b64 exec, -1")
    def unpack_reduce(n, base=8, scale=None):
        for k in range(n):
            b = base + 4 * k
            e(f"v_perm_b32 v{b+3}, v{b+1}, v{b}, s65\nv_lshl_or_b32 v{b+3}, v{b+2}, 24, v{b+3}")
        if scale:
            for i in range(4): e(f"v_mul_f32 v{base+i}, v{base+i}, v{scale}")
        for k in range(1, n):
            for i in range(4):
                if scale: e(f"v_fmac_f32 v{base+i}, v{base+4*k+i}, v{scale+k}")
                else: e(f"v_add_f32 v{base+i}, v{base+i}, v{base+4*k+i}")
        b = base
        e(f"""v_permlane32_swap_b32 v{b}, v{b+2}
              v_permlane32_swap_b32 v{b+1}, v{b+3}
              v_add_f32 v{b}, v{b}, v{b+2}
              v_add_f32 v{b+1}, v{b+1}, v{b+3}
              v_permlane16_swap_b32 v{b}, v{b+1}
              v_add_f32 v{b}, v{b}, v{b+1}""")
    def ln_finish(x, mean, var, out, t):
        e(f"""v_cvt_pk_bf16_f32 v{t}, v{mean}, v{var}
              v_lshlrev_b32 v{mean}, 16, v{t}
              v_and_b32 v{var}, 0xffff0000, v{t}
              v_add_f32 v{var}, {hex(f2u(1e-5))}, v{var}
              v_sub_f32 v{out}, v{x}, v{mean}
              v_cvt_pk_bf16_f32 v{t}, v{out}, v{var}
              v_and_b32 v{var}, 0xffff0000, v{t}
              v_sqrt_f32 v{var}, v{var}
              v_lshlrev_b32 v{out}, 16, v{t}""")
        bf16r(var, var)
        e(f"v_rcp_f32 v{var}, v{var}\nv_mul_f32 v{out}, v{out}, v{var}")
        bf16r(out, out)
    def silu_dup(x, t):
        e(f"""v_max_f32 v{x}, 0xc3000000, v{x}
              v_mul_f32 v{t}, {hex(f2u(-1.4426950408889634))}, v{x}
              v_exp_f32 v{t}, v{t}
              v_add_f32 v{t}, 1.0, v{t}
              v_min_f32 v{t}, 0x7e800000, v{t}
              v_rcp_f32 v8, v{t}
              v_mul_f32 v9, v{x}, v8
              v_fma_f32 v{x}, -v9, v{t}, v{x}
              v_fma_f32 v{x}, v{x}, v8, v9
              v_cvt_pk_bf16_f32 v{x}, v{x}, v{x}""")
    def x1_from(attn, ga, x):
        bf16r(attn, attn)
        e(f"v_mul_f32 v{attn}, v{ga}, v{attn}")
        bf16r(attn, attn)
        e(f"v_add_f32 v{attn}, v{x}, v{attn}")
        bf16r(attn, attn)
    def kv_soff():
        e("""s_and_b32 s52, s5, 3
             s_lshl_b32 s52, s52, 2
             s_add_u32 s52, s52, s3
             s_lshl_b32 s52, s52, 12""")
    def start_barrier():
        e("""s_waitcnt lgkmcnt(0)
             s_mul_i32 s7, s42, 1664525
             s_add_u32 s7, s7, 1013904223
             s_barrier""")

    e.raw(open("cdna_kernels/" + NAME + ".s.ref").read().split("; Override launch")[0].rstrip("\n"))
    e.raw(f"; @launch grid=(256,1,1) block=(1024,1,1) lds={LDS_BYTES}")
    e.raw('.amdgcn_target "amdgcn-amd-amdhsa--gfx950"\n.text')
    e.raw(f".globl {KNAME}\n.p2align 8\n.type {KNAME},@function\n{KNAME}:")
    if P.get("x_amp") == "karg": e("s_memrealtime s[98:99]")
    e("""s_getpc_b64 s[70:71]
         v_lshlrev_b32 v2, 4, v0
         s_cmp_ge_u32 s2, 256
         s_cbranch_scc1 L_end
         global_load_dwordx4 v[124:127], v2, s[70:71] offset:-4
         s_load_dwordx16 s[16:31], s[0:1], 0
         s_load_dwordx8 s[32:39], s[0:1], 64
         s_load_dwordx2 s[40:41], s[0:1], 104
         v_lshrrev_b32 v1, 6, v0
         v_and_b32 v0, 63, v0
         s_and_b32 s4, s2, 7
         s_lshr_b32 s5, s2, 3
         v_readfirstlane_b32 s3, v1""")
    if diag: e("v_mov_b32 v31, 0")
    e("""s_lshl_b32 s52, s4, 25
         s_lshr_b32 s54, s5, 4
         s_lshl_b32 s54, s54, 24
         s_add_u32 s52, s52, s54
         s_and_b32 s54, s5, 15
         s_lshl_b32 s54, s54, 16
         s_add_u32 s52, s52, s54
         s_add_u32 s52, s52, 0xf00000
         s_waitcnt lgkmcnt(0)
         s_load_dword s42, s[40:41], 0""")
    srd(44, 40, 0x40000000)
    if P.get("x_amp"): e("s_memrealtime s[98:99]" if P["x_amp"] != "karg" else "s_memrealtime s[100:101]")
    if diag:
        e("s_memrealtime s[80:81]")
    e("""s_cmp_ge_u32 s3, 8
         s_cbranch_scc1 L_aw
         s_cmp_ge_u32 s3, 4
         s_cbranch_scc1 L_vw""")

    srd(8, 18, 65536, "s52")
    e("""v_lshrrev_b32 v1, 4, v0
         v_and_b32 v2, 15, v0
         v_xor_b32 v3, v1, v2
         v_lshlrev_b32 v3, 4, v3
         v_lshl_add_u32 v4, v1, 8, v3
         v_xor_b32 v5, 64, v4""")
    if P.get("x_noswz"): e("v_lshlrev_b32 v4, 4, v0\nv_mov_b32 v5, v4")
    e("""
         s_lshl_b32 s54, s3, 14
         v_xor_b32 v6, 0x80, v4
         v_xor_b32 v7, 0xc0, v4""")
    e(f"s_add_u32 m0, s54, {KIMG}")
    kv_soff()
    DK = P["DK"]
    for u in range(16):
        e(f"buffer_load_dwordx4 v{4+(u&3)}, s[8:11], s52 offen offset:{(u&3)*1024} nt lds")
        if (u & 3) == 3 and u < 15: e("s_addk_i32 s52, 0x4000\ns_addk_i32 m0, 0x1000\ns_and_b32 s52, s52, 0xffff")
        if u == DK - 1:
            start_barrier()
            if diag: e("v_writelane_b32 v31, s80, 0")
        if u >= DK - 1 and u < 15: e(f"s_waitcnt vmcnt({DK-1})")
    e(f"""s_lshl_b32 s54, s3, 2
          v_mov_b32 v29, s54
          v_mov_b32 v30, 1
          ds_write_b32 v29, v30 offset:{C_KI}""")
    stamp(1)
    e(f"""s_lshl_b32 s54, s3, 14
          s_add_u32 s54, s54, {KIMG}
          v_lshl_add_u32 v4, v2, 8, v3
          v_add_u32 v4, s54, v4
          v_xor_b32 v5, 64, v4
          v_xor_b32 v6, 0x80, v4
          v_xor_b32 v7, 0xc0, v4
          s_lshl_b32 s54, s3, 9
          v_lshl_add_u32 v24, v0, 2, s54
          v_and_b32 v25, 1, v0
          v_lshlrev_b32 v25, 8, v25
          v_lshl_add_u32 v25, v1, 4, v25
          v_add_u32 v25, s54, v25
          v_and_b32 v26, 3, v0
          v_lshlrev_b32 v26, 6, v26
          v_and_b32 v27, 60, v0
          v_add3_u32 v26, v26, v27, s54
          v_lshlrev_b32 v27, 4, v0
          v_lshlrev_b32 v28, 4, v0
          s_lshl_b32 s66, s4, 1
          s_lshr_b32 s54, s5, 4
          s_add_u32 s66, s66, s54
          s_lshl_b32 s67, s66, 12
          s_add_u32 s67, s67, {H2}
          s_lshl_b32 s68, s66, 10
          s_add_u32 s68, s68, {HML}
          s_and_b32 s54, s5, 15
          s_lshl_b32 s54, s54, 2
          s_add_u32 s54, s54, s3
          s_lshl_b32 s69, s54, 4
          s_add_u32 s69, s69, s68
          s_mov_b32 s82, 0xffff0000
          s_mov_b32 s83, 0
          s_mov_b32 s84, 0
          s_mov_b32 s85, 0xffff
          s_mov_b32 s86, 0
          s_mov_b32 s87, 0xffff0000
          s_mov_b32 s88, {hex(LOG2E)}
          s_waitcnt vmcnt(0)""")
    stamp(2)
    if P.get("x_nochain"): e("s_branch L_exit")
    for t in range(4):
        for i in range(4):
            r = 32 + 16 * t + 4 * i
            e(f"ds_read_b128 v[{r}:{r+3}], v{4+i} offset:{t*4096}")
    if P["fast"]: prepoll(67, [4 + 512 * k for k in range(8)])
    gather([f"buffer_load_dwordx4 v[{8+4*k}:{11+4*k}], v27, s[44:47], s67 offen offset:{1024*k}" for k in range(4)],
           [9, 11, 13, 15, 17, 19, 21, 23], 27, True)
    stamp(3)
    e(f"""v_add_f32 v8, v8, v16
          v_add_f32 v10, v10, v18
          v_add_f32 v12, v12, v20
          v_add_f32 v14, v14, v22
          v_cvt_pk_bf16_f32 v8, v8, v10
          v_cvt_pk_bf16_f32 v12, v12, v14
          ds_write_b32 v24, v8 offset:{QS}
          ds_write_b32 v24, v12 offset:{QS+256}""")
    for i in range(4): e(f"ds_read_b128 v[{96+4*i}:{99+4*i}], v25 offset:{QS+64*i}")
    for i in range(4):
        e(f"s_waitcnt lgkmcnt({3-i})")
        for t in range(4):
            r = 32 + 16 * t + 4 * i; d = 112 + 4 * t
            c = "0" if i == 0 else f"v[{d}:{d+3}]"
            e(f"v_mfma_f32_16x16x32_bf16 v[{d}:{d+3}], v[{96+4*i}:{99+4*i}], v[{r}:{r+3}], {c}")
    for h in range(2):
        e(f"v_cndmask_b32_e64 v{8+h}, v{112+h}, v{116+h}, s[82:83]")
    for h in range(2):
        e(f"v_cndmask_b32_e64 v{8+h}, v{8+h}, v{120+h}, s[84:85]")
    for h in range(2):
        e(f"v_cndmask_b32_e64 v{8+h}, v{8+h}, v{124+h}, s[86:87]")
    SC = hex(f2u(128 ** -0.5))
    e(f"""v_cvt_pk_bf16_f32 v10, v8, v9
          v_lshlrev_b32 v8, 16, v10
          v_and_b32 v9, 0xffff0000, v10
          v_mul_f32 v8, {SC}, v8
          v_mul_f32 v9, {SC}, v9
          v_cvt_pk_bf16_f32 v10, v8, v9
          v_lshlrev_b32 v8, 16, v10
          v_and_b32 v9, 0xffff0000, v10
          v_mov_b32 v10, v8
          v_mov_b32 v11, v9""")
    red("v_max_f32", [10, 11])
    e(f"""v_lshlrev_b32 v12, 1, v29
          v_mov_b32 v1, 0
          s_mov_b32 s58, 0
          s_mov_b32 s59, 0x80000000
          s_mov_b64 exec, s[58:59]
          ds_write_b64 v12, v[10:11] offset:{MX}
          ds_add_u32 v1, v30 offset:{C_M}
          s_mov_b64 exec, -1""")
    lds_wait(1, C_M, 4, sleep=0)
    e(f"""ds_read_b128 v[16:19], v1 offset:{MX}
          ds_read_b128 v[20:23], v1 offset:{MX+16}
          s_waitcnt lgkmcnt(0)
          v_max3_f32 v10, v16, v18, v20
          v_max3_f32 v11, v17, v19, v21
          v_max_f32 v10, v10, v22
          v_max_f32 v11, v11, v23
          v_sub_f32 v13, v8, v10
          v_sub_f32 v14, v9, v11
          v_mul_f32 v13, s88, v13
          v_mul_f32 v14, s88, v14
          v_exp_f32 v13, v13
          v_exp_f32 v14, v14
          v_lshrrev_b32 v12, 16, v10
          v_cvt_pk_bf16_f32 v8, v13, v13
          v_cvt_pk_bf16_f32 v9, v14, v14
          ds_write_b32 v26, v8 offset:{PS}
          ds_write_b32 v26, v9 offset:{PS+256}
          ds_write_b32 v29, v30 offset:{C_P}
          v_or_b32 v12, v12, v11
          v_mov_b32 v15, s7""")
    stamp(4)
    red("v_add_f32", [13, 14])
    e("s_mov_b64 exec, s[58:59]")
    publish("buffer_store_dwordx4 v[12:15], v1, s[44:47], {so} offen", True, 69)
    e("s_mov_b64 exec, -1")
    stamp(6)
    e("""s_cmp_lg_u32 s3, 0
         s_cbranch_scc1 L_exit
         s_cmp_ge_u32 s5, 27
         s_cbranch_scc1 L_exit
         s_mov_b32 s6, 8""")
    aw_consts()
    e("""s_cmp_lt_u32 s5, 9
         s_cbranch_scc1 L_wd_down
         s_branch L_gu_post""")

    e.label("L_vw")
    CODE_KB = P.get("code_kb", 16)
    e("""s_sub_u32 s3, s3, 4
         v_lshlrev_b32 v27, 4, v0""")
    srd(8, 20, 65536, "s52")
    kv_soff()
    masks()
    pack_consts()
    e(f"""s_lshl_b32 s54, s3, 2
          v_mov_b32 v29, s54
          v_mov_b32 v1, 0
          v_bfe_u32 v2, v0, 3, 1
          v_lshlrev_b32 v28, 8, v2
          v_and_b32 v3, 48, v0
          v_lshl_add_u32 v28, v3, 2, v28
          s_lshl_b32 s54, s3, 9
          v_add_u32 v28, s54, v28
          v_and_b32 v3, 32, v0
          v_lshl_add_u32 v30, v2, 4, v3
          v_and_b32 v3, 7, v0
          v_lshl_add_u32 v30, v3, 1, v30
          v_bfe_u32 v3, v0, 4, 1
          v_add_u32 v30, v30, v3
          v_lshlrev_b32 v30, 4, v30
          s_lshl_b32 s54, s3, 10
          v_add_u32 v30, s54, v30
          s_lshl_b32 s66, s4, 5
          s_add_u32 s66, s66, s5
          s_lshl_b32 s66, s66, 10
          s_add_u32 s66, s66, {H3}""")
    if P["prewarm"]:
        e(f"""s_lshl_b32 s67, s4, 1
              s_lshr_b32 s54, s5, 4
              s_add_u32 s67, s67, s54
              s_lshl_b32 s67, s67, 2
              s_add_u32 s67, s67, s3
              s_lshl_b32 s67, s67, 10
              s_add_u32 s67, s67, {H2}
              buffer_load_dwordx4 v[96:99], v27, s[44:47], s67 offen sc1""")
    start_barrier()
    if diag: e("v_writelane_b32 v31, s80, 0")
    lds_wait(29, C_KI, 1)
    stamp(1)
    DV = P["DV"]
    for u in range(16):
        e(f"buffer_load_dwordx4 v[{32+4*u}:{35+4*u}], v27, s[8:11], s52 offen offset:{(u&3)*1024} nt")
        if (u & 3) == 3 and u < 15: e("s_addk_i32 s52, 0x4000\ns_and_b32 s52, s52, 0xffff")
        if u >= DV - 1 and u < 15: e(f"s_waitcnt vmcnt({DV-1})")
    e(f"""v_mov_b32 v2, 1
          s_mov_b64 exec, 1
          ds_add_u32 v1, v2 offset:{C_VI}
          s_mov_b64 exec, -1""")
    stamp(2)
    if P.get("x_nochain"):
        e("s_waitcnt vmcnt(0)"); stamp(4); e("s_branch L_exit")
    lds_wait(29, C_P, 1)
    stamp(3)
    for i in range(4): e(f"ds_read_b128 v[{8+4*i}:{11+4*i}], v28 offset:{PS+16*i}")
    for u in range(16):
        if u % 4 == 0: e(f"s_waitcnt lgkmcnt({3-u//4})")
        a = 96 + 4 * (u % 8)
        for j in range(4): e(f"v_and_b32 v{a+j}, v{8+u}, v{4+j}")
        if u > 0:
            pa = 96 + 4 * ((u - 1) % 8)
            if 15 - (u - 1) < DV: e(f"s_waitcnt vmcnt({15-(u-1)})")
            c = "0" if u == 1 else "v[24:27]"
            if u == 1: e("v_mov_b32 v3, v27")
            e(f"v_mfma_f32_16x16x32_bf16 v[24:27], v[{pa}:{pa+3}], v[{32+4*(u-1)}:{35+4*(u-1)}], {c}")
    e("s_waitcnt vmcnt(0)")
    stamp(4)
    e(f"""v_mfma_f32_16x16x32_bf16 v[24:27], v[124:127], v[92:95], v[24:27]
          v_mov_b32 v2, 1
          ds_write_b128 v30, v[24:27] offset:{PVP}
          s_mov_b64 exec, 1
          ds_add_rtn_u32 v2, v1, v2 offset:{C_PV}
          s_mov_b64 exec, -1
          s_waitcnt lgkmcnt(0)
          v_readfirstlane_b32 s54, v2
          s_cmp_lg_u32 s54, 3
          s_cbranch_scc1 L_exit""")
    for i in range(4): e(f"ds_read_b128 v[{8+4*i}:{11+4*i}], v3 offset:{PVP+1024*i}")
    for k in range(1, 4):
        e(f"s_waitcnt lgkmcnt({3-k})")
        for i in range(4): e(f"v_add_f32 v{8+i}, v{8+i}, v{8+4*k+i}")
    pack4(8, 9, 10, 11)
    publish("buffer_store_dwordx4 v[8:11], v3, s[44:47], {so} offen", True, 66)
    e(f"v_mov_b32 v2, 1\nds_write_b32 v1, v2 offset:{C_PUB}")
    stamp(5)
    e("s_branch L_exit")

    e.label("L_aw")
    e("s_sub_u32 s6, s3, 8")
    if P.get("x_noaw"):
        e("v_lshlrev_b32 v30, 3, v0\nv_mov_b32 v8, 0\nv_mov_b32 v9, 0")
        e(f"ds_write_b64 v30, v[8:9] offset:{STAT}")
        start_barrier(); e("s_branch L_exit")
    e("""s_cmp_lt_u32 s5, 9
         s_cbranch_scc1 L_wd
         s_cmp_lt_u32 s5, 25
         s_cbranch_scc1 L_q""")
    def zero_lds():
        Lz = e.newlabel("z")
        e(f"""s_cmp_lg_u32 s6, 7
              s_cbranch_scc1 {Lz}
              v_mov_b32 v8, 0
              v_mov_b32 v9, 0
              ds_write_b64 v30, v[8:9] offset:{STAT}""")
        e.label(Lz)
    e(f"""s_mul_i32 s66, s4, 7
          s_add_u32 s66, s66, s5
          s_sub_u32 s66, s66, 25
          s_mul_i32 s67, s66, 0x5556
          s_lshr_b32 s67, s67, 16
          s_mul_i32 s54, s67, 3
          s_sub_u32 s68, s66, s54
          s_mul_i32 s69, s68, 3
          s_add_u32 s69, s69, s6""")
    srd(8, 36, 576 * 6912)
    srd(48, 34, 1152)
    blk_voff(26, 6912)
    e("""s_cmp_lt_u32 s66, 54
         s_cselect_b32 s55, s6, 7
         s_cmp_ge_u32 s55, 3
         s_cbranch_scc1 L_a_skip""")
    e(f"""s_mul_i32 s52, s69, {64*6912}
          s_lshl_b32 s54, s67, 7
          s_add_u32 s52, s52, s54
          s_lshl_b32 s54, s69, 7
          v_lshlrev_b32 v2, 1, v0
          buffer_load_ushort v25, v2, s[48:51], s54 offen""")
    blk_load(8, 26, 52, 6912, 32, P["DE"])
    aw_consts()
    start_barrier()
    if diag: e("v_writelane_b32 v31, s80, 0")
    e(f"""s_mul_i32 s52, s68, {1152*8}
          s_lshl_b32 s54, s67, 9
          s_add_u32 s52, s52, s54
          s_add_u32 s52, s52, {H1}
          s_waitcnt vmcnt(8)
          v_lshlrev_b32 v25, 16, v25""")
    silu_dup(25, 2)
    blk_prep(25)
    blk_run(32)
    stamp(1)
    blk_reduce(PARTE, C_E, 3, "L_a_done")
    e("v_mov_b32 v9, s7")
    publish("buffer_store_dwordx2 v[8:9], v30, s[44:47], {so} offen", False, 52)
    stamp(2)
    e("s_branch L_a_done")
    e.label("L_a_skip")
    aw_consts()
    zero_lds()
    start_barrier()
    if diag: e("v_writelane_b32 v31, s80, 0")
    e.label("L_a_done")
    e("s_cmp_lt_u32 s5, 27\ns_cbranch_scc1 L_gu_post")
    e("""s_mul_i32 s66, s4, 5
         s_add_u32 s66, s66, s5
         s_sub_u32 s66, s66, 27
         s_cmp_ge_u32 s66, 36
         s_cbranch_scc1 L_exit""")
    blk_voff(26, 6912)
    e(f"""s_mul_i32 s52, s6, {64*6912}
          s_lshl_b32 s67, s66, 7
          s_add_u32 s67, s67, {18*128}
          s_add_u32 s52, s52, s67
          s_add_u32 s67, s67, {8*64*6912}
          s_lshl_b32 s54, s6, 7
          v_lshlrev_b32 v2, 1, v0
          buffer_load_ushort v22, v2, s[48:51], s54 offen
          buffer_load_ushort v23, v2, s[48:51], 0 offen offset:1024""")
    e(f"""s_mul_i32 s54, s6, {8*6912}
          s_add_u32 s67, s67, s54
          s_lshl_b32 s54, s6, 5
          v_add_u32 v21, s54, v3
          s_waitcnt vmcnt(0)
          v_lshlrev_b32 v22, 16, v22
          v_lshlrev_b32 v23, 16, v23""")
    silu_dup(22, 2)
    silu_dup(23, 2)
    blk_prep(22)
    e("ds_bpermute_b32 v8, v21, v23\ns_waitcnt lgkmcnt(0)")
    for j in range(4): e(f"v_and_b32 v{36+j}, v8, v{4+j}")
    if P["mod_gate"] == "K": lds_wait(1, C_KI, 1)
    elif P["mod_gate"] == "V": lds_wait(1, C_VI, 4)
    blk_load(8, 26, 52, 6912, 64, P["DMOD"])
    e(f"s_waitcnt vmcnt({P['DMOD']-1})")
    e("buffer_load_dwordx4 v[32:35], v26, s[8:11], s67 offen nt")
    blk_run(64, 1)
    e("s_waitcnt vmcnt(0)\nv_mfma_f32_16x16x32_bf16 v[24:27], v[36:39], v[32:35], v[24:27]")
    stamp(3)
    blk_reduce(PARTP, C_PP, 8, "L_exit")
    bf16r(8, 8)
    e(f"""s_cmp_ge_u32 s66, 27
          s_cbranch_scc1 L_final
          s_lshl_b32 s52, s66, 9
          s_add_u32 s52, s52, {HMOD}
          v_mov_b32 v9, s7""")
    publish("buffer_store_dwordx2 v[8:9], v30, s[44:47], {so} offen", False, 52)
    stamp(4)
    e("s_branch L_exit")
    e.label("L_final")
    stamp(4)
    if P.get("x_nochain"): e("s_branch L_exit")
    pack_consts()
    srd(48, 16, 1152)
    e(f"""s_sub_u32 s66, s66, 27
          v_mov_b32 v24, v8
          s_lshl_b32 s54, s66, 7
          v_lshlrev_b32 v23, 1, v0
          v_add_u32 v23, s54, v23
          buffer_load_ushort v25, v23, s[48:51], 0 offen
          s_lshl_b32 s67, s66, 9
          s_add_u32 s67, s67, {HMOD}
          s_lshl_b32 s68, s66, 11
          s_add_u32 s69, s68, {H6}
          s_add_u32 s68, s68, {H4}
          v_lshlrev_b32 v27, 4, v0""")
    if P.get("x_amp") == "mod": e("s_memrealtime s[100:101]")
    lds_wait(1, C_PUB, 1)
    if P.get("x_amp") == "pub": e("s_memrealtime s[100:101]")
    gather(["buffer_load_dwordx2 v[20:21], v30, s[44:47], s67 offen"], [21], 30, False)
    gather([f"buffer_load_dwordx4 v[{8+4*k}:{11+4*k}], v27, s[44:47], s68 offen offset:{1024*k}" for k in range(2)], [11, 15], 27, False)
    unpack_reduce(2)
    e("v_lshlrev_b32 v25, 16, v25")
    x1_from(8, 20, 25)
    e("v_mov_b32 v25, v8")
    srd(48, 38, 1152)
    stamp(5)
    if P.get("x_amp") == "x1": e("s_memrealtime s[100:101]")
    gather([f"buffer_load_dwordx4 v[{8+4*k}:{11+4*k}], v27, s[44:47], s69 offen offset:{1024*k}" for k in range(2)], [11, 15], 27, False)
    stamp(6)
    unpack_reduce(2)
    bf16r(8, 8)
    e("v_mul_f32 v8, v24, v8")
    bf16r(8, 8)
    e("""v_add_f32 v8, v25, v8
         v_cvt_pk_bf16_f32 v8, v8, v8
         buffer_store_short v8, v23, s[48:51], 0 offen
         s_cmp_lg_u32 s66, 0
         s_cbranch_scc1 L_exit
         v_mov_b32 v9, s7
         s_mov_b64 exec, 1
         buffer_store_dword v9, v1, s[44:47], 0 offen sc1
         s_mov_b64 exec, -1""")
    if P.get("x_amp"):
        if P["x_amp"] == "end": e("s_memrealtime s[100:101]")
        e("""s_memrealtime s[80:81]
             s_waitcnt lgkmcnt(0)
             s_sub_u32 s54, s100, s98
             s_min_u32 s54, s54, 20000
             s_mul_i32 s54, s54, 4
             s_add_u32 s54, s54, s80""")
        e.label("L_amp")
        e("""s_memrealtime s[80:81]
             s_waitcnt lgkmcnt(0)
             s_sub_u32 s55, s54, s80
             s_cmp_gt_i32 s55, 0
             s_cbranch_scc1 L_amp""")
    e("s_branch L_exit")

    e.label("L_q")
    e("""s_sub_u32 s66, s5, 9
         s_and_b32 s67, s66, 1
         s_lshr_b32 s68, s66, 1
         s_mul_i32 s69, s67, 5
         s_add_u32 s69, s69, s6
         s_sub_u32 s89, 5, s67""")
    srd(8, 22, 576 * 8192)
    srd(48, 16, 1152)
    blk_voff(26, 8192)
    e("s_cmp_ge_u32 s6, s89\ns_cbranch_scc1 L_a_skip")
    e(f"""s_lshl_b32 s52, s69, 19
          s_lshl_b32 s54, s4, 10
          s_add_u32 s52, s52, s54
          s_lshl_b32 s54, s68, 7
          s_add_u32 s52, s52, s54
          s_lshl_b32 s54, s69, 7
          v_lshlrev_b32 v2, 1, v0
          buffer_load_ushort v25, v2, s[48:51], s54 offen""")
    for k in range(9): e(f"buffer_load_ushort v{9+k}, v2, s[48:51], 0 offen offset:{128*k}")
    blk_load(8, 26, 52, 8192, 32, P["DQ"], barrier_at=True)
    e("s_waitcnt vmcnt(8)\nv_lshlrev_b32 v25, 16, v25")
    for k in range(9): e(f"v_lshlrev_b32 v{9+k}, 16, v{9+k}")
    e("v_add_f32 v18, v9, v10")
    for k in range(2, 9): e(f"v_add_f32 v18, v18, v{9+k}")
    red("v_add_f32", [18])
    e(f"v_mul_f32 v18, {hex(f2u(1/576))}, v18\nv_readlane_b32 s90, v18, 63\nv_mov_b32 v19, 0")
    for k in range(9): e(f"v_subrev_f32 v{9+k}, s90, v{9+k}\nv_fmac_f32 v19, v{9+k}, v{9+k}")
    red("v_add_f32", [19])
    e(f"v_mul_f32 v19, {hex(f2u(1/576))}, v19\nv_readlane_b32 s91, v19, 63\nv_mov_b32 v18, s90\nv_mov_b32 v19, s91")
    ln_finish(25, 18, 19, 24, 2)
    e(f"""s_lshl_b32 s90, s69, 9
          s_add_u32 s90, s90, {H1}
          s_add_u32 s91, s90, {576*8}
          s_add_u32 s92, s90, {1152*8}
          s_add_u32 s93, s91, {1152*8}
          s_add_u32 s94, s92, {1152*8}
          s_add_u32 s95, s93, {1152*8}
          s_lshl_b32 s52, s4, 13
          s_lshr_b32 s54, s68, 2
          s_lshl_b32 s54, s54, 12
          s_add_u32 s52, s52, s54
          s_lshl_b32 s54, s67, 11
          s_add_u32 s52, s52, s54
          s_and_b32 s54, s68, 3
          s_lshl_b32 s54, s54, 9
          s_add_u32 s52, s52, s54
          s_add_u32 s52, s52, {H2}""")
    stamp(1)
    if P.get("x_nochain"):
        e("s_waitcnt vmcnt(0)"); stamp(2); e("s_branch L_gu_post")
    prepoll(90, [4 + 576 * 8 * k for k in range(6)])
    gather([f"buffer_load_dwordx2 v[{8+2*k}:{9+2*k}], v30, s[44:47], s{90+k} offen" for k in range(6)], [9, 11, 13, 15, 17, 19], 30, False)
    stamp(2)
    e("""v_add_f32 v8, v8, v12
         v_add_f32 v10, v10, v14
         v_add_f32 v8, v8, v16
         v_add_f32 v10, v10, v18
         v_cvt_pk_bf16_f32 v2, v8, v10
         v_lshlrev_b32 v8, 16, v2
         v_and_b32 v10, 0xffff0000, v2
         v_add_f32 v10, 1.0, v10""")
    bf16r(10, 10)
    e("v_mul_f32 v10, v24, v10")
    bf16r(10, 10)
    e("v_add_f32 v10, v10, v8\nv_cvt_pk_bf16_f32 v23, v10, v10")
    blk_mfma(23, 32, True)
    blk_reduce(PARTE, C_E, "s89", "L_gu_post")
    e("v_mov_b32 v9, s7")
    publish("buffer_store_dwordx2 v[8:9], v30, s[44:47], {so} offen", True, 52)
    stamp(3)

    e.label("L_gu_post")
    e("""s_sub_u32 s66, s5, 9
         s_and_b32 s67, s66, 1
         s_lshr_b32 s68, s66, 1
         s_cmp_eq_u32 s67, 0
         s_cselect_b32 s12, s28, s30
         s_cselect_b32 s13, s29, s31
         s_and_b32 s13, s13, 0xffff""")
    e(f"s_mov_b32 s14, {576*9216}\ns_mov_b32 s15, 0x20000")
    srd(48, 16, 1152)
    pack_consts()
    blk_voff(26, 9216)
    e(f"""s_mul_i32 s52, s6, {64*9216}
          s_mul_i32 s54, s4, 9
          s_add_u32 s54, s54, s68
          s_lshl_b32 s54, s54, 7
          s_add_u32 s52, s52, s54
          s_lshl_b32 s54, s6, 7
          v_lshlrev_b32 v2, 1, v0
          buffer_load_ushort v25, v2, s[48:51], s54 offen
          s_lshl_b32 s90, s6, 9
          s_add_u32 s90, s90, {HMOD}
          s_add_u32 s91, s90, {576*8}
          s_add_u32 s92, s91, {576*8}
          s_lshl_b32 s93, s6, 11
          s_add_u32 s93, s93, {H4}
          s_lshl_b32 s94, s4, 1
          s_add_u32 s94, s94, s67
          s_mul_i32 s94, s94, {576*8}
          s_lshl_b32 s54, s68, 9
          s_add_u32 s94, s94, s54
          s_add_u32 s94, s94, {H5}
          v_lshlrev_b32 v27, 4, v0
          s_lshl_b32 s54, s6, 3
          v_mov_b32 v22, s54
          v_and_b32 v23, 15, v0
          v_lshlrev_b32 v23, 3, v23""")
    lds_wait(1, C_VI, 4)
    stamp(8)
    blk_load(12, 26, 52, 9216, 64, P["DP"])
    stamp(9)
    if P.get("x_nochain"):
        e("s_waitcnt vmcnt(0)"); stamp(10); e("s_branch L_exit")
    gather([f"buffer_load_dwordx2 v[{16+2*k}:{17+2*k}], v30, s[44:47], s{90+k} offen" for k in range(3)], [17, 19, 21], 30, False)
    stamp(10)
    e("v_lshlrev_b32 v25, 16, v25\nv_add_f32 v20, 1.0, v20")
    bf16r(20, 20)
    gather([f"buffer_load_dwordx4 v[{8+4*k}:{11+4*k}], v27, s[44:47], s93 offen offset:{1024*k}" for k in range(2)], [11, 15], 27, False)
    stamp(11)
    unpack_reduce(2)
    x1_from(8, 16, 25)
    e("""v_readfirstlane_b32 s54, v8
         v_subrev_f32 v10, s54, v8
         v_mul_f32 v11, v10, v10""")
    red("v_add_f32", [10, 11])
    e(f"""v_mul_f32 v12, v10, v10
          v_mov_b32 v13, s54
          v_fmac_f32 v10, 0x42800000, v13
          v_fmac_f32 v11, 0xbc800000, v12
          s_mov_b32 s58, 0
          s_mov_b32 s59, 0x80000000
          s_mov_b64 exec, s[58:59]
          ds_write_b64 v22, v[10:11] offset:{STAT}
          s_mov_b64 exec, -1
          s_waitcnt lgkmcnt(0)
          s_barrier
          ds_read_b64 v[10:11], v23 offset:{STAT}
          v_cmp_gt_u32 vcc, 72, v23
          s_waitcnt lgkmcnt(0)
          v_mov_b32 v12, v10""")
    red("v_add_f32", [12], full=False)
    e(f"""v_mul_f32 v12, {hex(f2u(1/576))}, v12
          v_fmac_f32 v10, 0xc2800000, v12
          v_cndmask_b32 v10, 0, v10, vcc
          v_mul_f32 v10, v10, v10
          v_fmac_f32 v11, 0x3c800000, v10""")
    red("v_add_f32", [11], full=False)
    e(f"v_mul_f32 v11, {hex(f2u(1/576))}, v11")
    ln_finish(8, 12, 11, 9, 2)
    e("v_mul_f32 v9, v9, v20")
    bf16r(9, 9)
    e("v_add_f32 v9, v9, v18\nv_cvt_pk_bf16_f32 v23, v9, v9")
    stamp(12)
    blk_mfma(23, 64, True)
    blk_reduce(PARTP, C_PP, 9, "L_exit")
    bf16r(8, 8)
    e("v_mov_b32 v9, s7")
    publish("buffer_store_dwordx2 v[8:9], v30, s[44:47], {so} offen", True, 94)
    stamp(13)
    e("s_branch L_exit")

    e.label("L_wd")
    srd(8, 24, 4096 * 1152)
    blk_voff(26, 1152)
    e(f"""s_lshl_b32 s52, s4, 3
          s_add_u32 s52, s52, s6
          s_mul_i32 s52, s52, {64*1152}
          s_lshl_b32 s54, s5, 7
          s_add_u32 s52, s52, s54""")
    aw_consts()
    zero_lds()
    start_barrier()
    if diag: e("v_writelane_b32 v31, s80, 0")
    blk_load(8, 26, 52, 1152, 32, P["DWO"])
    pack_consts()
    e(f"""s_lshl_b32 s90, s4, 1
          s_lshr_b32 s54, s6, 2
          s_add_u32 s90, s90, s54
          s_lshl_b32 s90, s90, 14
          s_and_b32 s54, s6, 3
          s_lshl_b32 s54, s54, 8
          s_add_u32 s90, s90, s54
          s_add_u32 s90, s90, {H3}
          s_add_u32 s91, s90, 0x1000
          s_add_u32 s92, s90, 0x2000
          s_add_u32 s93, s90, 0x3000
          v_lshrrev_b32 v25, 4, v0
          v_lshlrev_b32 v25, 10, v25
          v_and_b32 v2, 15, v0
          v_lshl_add_u32 v25, v2, 4, v25
          v_bfe_u32 v24, v0, 3, 2
          v_lshlrev_b32 v24, 6, v24
          v_lshrrev_b32 v2, 5, v0
          v_lshl_add_u32 v100, v2, 2, v24
          s_lshl_b32 s52, s5, 3
          s_add_u32 s52, s52, s4
          s_lshl_b32 s52, s52, 8
          s_add_u32 s52, s52, {H4}""")
    stamp(1)
    if P.get("x_nochain"):
        lds_wait(1, C_VI, 4); e("s_branch L_wd_down")
    if P["prewarm"]:
        for k in range(4): e(f"buffer_load_dwordx4 v[{8+4*k}:{11+4*k}], v25, s[44:47], s{90+k} offen sc1")
    e(f"""s_lshl_b32 s94, s4, 1
          s_lshr_b32 s54, s6, 2
          s_add_u32 s94, s94, s54
          s_lshl_b32 s94, s94, 10
          s_add_u32 s94, s94, {HML}
          v_lshlrev_b32 v27, 4, v0
          s_mov_b32 s88, {hex(LOG2E)}
          s_bitcmp1_b32 s6, 1
          s_cselect_b32 s95, 0, 16
          s_cselect_b64 s[58:59], -1, 0
          v_and_b32 v24, 48, v0""")
    if P["prewarm"]:
        e(f"""buffer_load_dwordx4 v[16:19], v27, s[44:47], s94 offen sc1
              s_mul_i32 s54, s4, {2*576*8}
              s_mul_i32 s55, s6, 1152
              s_add_u32 s54, s54, s55
              s_add_u32 s54, s54, {H5}
              buffer_load_dwordx4 v[16:19], v27, s[44:47], s54 offen sc1
              buffer_load_dwordx4 v[16:19], v27, s[44:47], s54 offen offset:128 sc1""")
    lds_wait(1, C_P, 1)
    gather(["buffer_load_dwordx4 v[16:19], v27, s[44:47], s94 offen"], [19], 27, True)
    e("""v_lshlrev_b32 v16, s95, v16
         v_and_b32 v16, 0xffff0000, v16
         v_cndmask_b32_e64 v17, v17, v18, s[58:59]
         v_mov_b32 v10, v16""")
    red("v_max_f32", [10])
    e("""v_readlane_b32 s54, v10, 63
         v_subrev_f32 v16, s54, v16
         v_mul_f32 v16, s88, v16
         v_exp_f32 v16, v16
         v_mul_f32 v17, v17, v16""")
    red("v_add_f32", [17])
    e("""v_rcp_f32 v17, v17
         v_readlane_b32 s54, v17, 63
         v_mul_f32 v16, s54, v16""")
    for k in range(4): e(f"ds_bpermute_b32 v{104+k}, v24, v16 offset:{64*k}")
    stamp(5)
    lds_wait(1, C_PUB, 1)
    stamp(2)
    gather([f"buffer_load_dwordx4 v[{8+4*k}:{11+4*k}], v25, s[44:47], s{90+k} offen" for k in range(4)], [11, 15, 19, 23], 25, True)
    stamp(3)
    unpack_reduce(4, scale=104)
    e("v_cvt_pk_bf16_f32 v23, v8, v8\nv_mov_b32 v22, v100")
    blk_mfma(23, 32, True, vb=22, step=8)
    blk_reduce(PARTE, C_E, 8, "L_wd_down")
    e("v_lshlrev_b32 v27, 4, v0")
    publish_cols_f16p(52)
    stamp(4)
    e.label("L_wd_down")
    srd(12, 32, 4608 * 1152)
    pack_consts()
    blk_voff(26, 1152)
    e(f"""s_mul_i32 s52, s4, 9
          s_add_u32 s52, s52, s6
          s_mul_i32 s52, s52, {64*1152}
          s_lshl_b32 s54, s5, 7
          s_add_u32 s52, s52, s54""")
    blk_load(12, 26, 52, 1152, 64, P["DDN"])
    e(f"""s_mul_i32 s90, s4, {2*576*8}
          s_lshl_b32 s54, s6, 9
          s_add_u32 s90, s90, s54
          s_add_u32 s90, s90, {H5}
          s_add_u32 s91, s90, {576*8}
          s_lshl_b32 s52, s5, 3
          s_add_u32 s52, s52, s4
          s_lshl_b32 s52, s52, 8
          s_add_u32 s52, s52, {H6}
          v_mov_b32 v25, v30
          s_mov_b32 s92, {hex(f2u(0.044715))}""")
    stamp(8)
    if P.get("x_nochain"):
        e("s_waitcnt vmcnt(0)"); stamp(9); e("s_branch L_exit")
    gather([f"buffer_load_dwordx2 v[{8+2*k}:{9+2*k}], v25, s[44:47], s{90+k} offen" for k in range(2)], [9, 11], 25, True)
    stamp(9)
    KG = -2 * 0.7978845608028654 * 1.4426950408889634
    e(f"""v_mul_f32 v12, v8, v8
          v_fma_f32 v12, v12, s92, 1.0
          v_mul_f32 v12, v12, v8
          v_mul_f32 v12, {hex(f2u(KG))}, v12
          v_exp_f32 v12, v12
          v_add_f32 v12, 1.0, v12
          v_rcp_f32 v12, v12
          v_mul_f32 v12, v12, v8""")
    bf16r(12, 12)
    e("v_mul_f32 v12, v12, v10\nv_cvt_pk_bf16_f32 v23, v12, v12")
    blk_mfma(23, 64, True)
    blk_reduce(PARTP, C_PP, 9, "L_exit")
    e("v_lshlrev_b32 v27, 4, v0")
    publish_cols_f16p(52)
    stamp(10)

    e.label("L_exit")
    if diag:
        stamp(15)
        e(f"""s_getreg_b32 s54, hwreg(HW_REG_HW_ID)
              v_writelane_b32 v31, s54, 16
              s_mov_b32 exec_hi, 0
              v_lshlrev_b32 v2, 2, v0
              buffer_store_dword v31, v2, s[44:47], s96 offen""")
    e.label("L_end")
    e("s_endpgm")
    e.raw("L_code_end:")
    e.raw(f".fill ({CODE_KB}*1024 - (L_code_end-{KNAME}))/4, 4, 0xBF800000")
    e.raw("s_endpgm")
    e.raw(f""".section .rodata,"a"
.p2align 6
.amdhsa_kernel {KNAME}
  .amdhsa_next_free_vgpr 128
  .amdhsa_next_free_sgpr 102
  .amdhsa_accum_offset 128
  .amdhsa_group_segment_fixed_size 0
  .amdhsa_kernarg_size 112
  .amdhsa_user_sgpr_count 2
  .amdhsa_user_sgpr_kernarg_segment_ptr 1
  .amdhsa_system_sgpr_workgroup_id_x 1
.end_amdhsa_kernel""")
    txt = e.text()
    if diag:
        txt = txt.replace("    s_memrealtime s[80:81]\n    s_cmp_ge_u32 s3, 8",
                          f"    s_lshl_b32 s96, s2, 4\n    s_add_u32 s96, s96, s3\n    s_lshl_b32 s96, s96, 7\n    s_add_u32 s96, s96, {STAMPS}\n    s_memrealtime s[80:81]\n    s_cmp_ge_u32 s3, 8", 1)
    return txt

if __name__ == "__main__":
    kw = {}
    out = "cdna_kernels/" + NAME + ".s"
    for a in sys.argv[1:]:
        k, v = a.split("=")
        if k == "out": out = v
        else: kw[k] = eval(v)
    open(out, "w").write(gen(**kw))
```

```python
import sys, struct
from emit import Emit

NAME = "adaLN_cond__sliding_block_cached__glu_gated_geglu__decode"
KNAME = NAME + "_kernel"

def f2u(x): return struct.unpack("<I", struct.pack("<f", x))[0]

H1, HMOD, H4, H6 = 0x1000, 0x8000, 0xD000, 0x12000
H2, HML, H5, H3 = 0x20000, 0x30000, 0x38000, 0x50000
SLOW = 0x80000
HINT = 0x18000
STAMPS = 0x20000000
QS, PS, PVP, PARTE, PARTP, STAT, CNT, KIMG = 0, 0x800, 0x1000, 0x2000, 0x3400, 0x4800, 0x4900, 0x5000
LDS_BYTES = 0x15000
C_KI, C_P, C_VI, C_PV, C_E, C_PP, C_PUB, C_M = CNT, CNT + 16, CNT + 32, CNT + 36, CNT + 40, CNT + 44, CNT + 48, CNT + 52
C_Q = CNT + 56
C_W = CNT + 60
MX = CNT + 64
ML = CNT + 128

DEF = dict(diag=False, DK=3, DV=4, DE=8, DQ=2, DWO=1, DP=2, DMOD=1, NM1=5, prf='nt', hint=True, hsleep=2, hdelay=0, DP9=4, x_ifl='sc1', x_xfl='sc1', NDN1=0, DDN=8, RQ=3, PSLEEP=7, p_gate="VI", NFAST=128, SPINMAX=1 << 16, fast=True,
           mod_gate=None, prewrite=True, prewrite_x=False, dn_gate=True, prepoll=False, sleep=1)

def gen(**kw):
    P = dict(DEF); P.update(kw)
    e = Emit()
    diag = P["diag"]
    LOG2E = f2u(1.4426950408889634)

    def stamp(k):
        if diag:
            e(f"s_memrealtime s[80:81]\ns_waitcnt lgkmcnt(0)\nv_writelane_b32 v31, s80, {k}")
    def srd(d, lo, nbytes, off=None):
        if off is None:
            e(f"s_mov_b32 s{d}, s{lo}\ns_and_b32 s{d+1}, s{lo+1}, 0xffff")
        else:
            e(f"s_add_u32 s{d}, s{lo}, {off}\ns_addc_u32 s{d+1}, s{lo+1}, 0\ns_and_b32 s{d+1}, s{d+1}, 0xffff")
        e(f"s_mov_b32 s{d+2}, {nbytes}\ns_mov_b32 s{d+3}, 0x20000")
    def bf16r(d, s):
        e(f"v_cvt_pk_bf16_f32 v{d}, v{s}, v{s}\nv_and_b32 v{d}, 0xffff0000, v{d}")
    def red(op, chains, full=True):
        steps = ["row_ror:8 row_mask:0xf", "row_ror:4 row_mask:0xf", "row_ror:2 row_mask:0xf", "row_ror:1 row_mask:0xf"]
        if full: steps += ["row_bcast:15 row_mask:0xa", "row_bcast:31 row_mask:0xc"]
        for st in steps:
            for c in chains:
                e(f"{op}_dpp v{c}, v{c}, v{c} {st} bank_mask:0xf")
    def lds_wait(vaddr, off, val, tmp=2, sleep=1, bound=None):
        L = e.newlabel("lw"); D = e.newlabel("lwd")
        e(f"s_mov_b32 s53, {bound or P['SPINMAX']*8}")
        e.label(L)
        e(f"""ds_read_b32 v{tmp}, v{vaddr} offset:{off}
              s_waitcnt lgkmcnt(0)
              v_readfirstlane_b32 s54, v{tmp}
              s_cmp_ge_u32 s54, {val}
              s_cbranch_scc1 {D}
              s_sleep {sleep}
              s_sub_u32 s53, s53, 1
              s_cmp_lg_u32 s53, 0
              s_cbranch_scc1 {L}""")
        e.label(D)
    def gather(loads, tags, vaddr, intra, fstamp=None):
        assert len(loads) == len(tags) or len(loads) == 1
        L = e.newlabel("g"); D = e.newlabel("gd"); C = e.newlabel("gc")
        e("s_mov_b32 s53, 0")
        vas = vaddr if isinstance(vaddr, list) else [vaddr]
        if intra and not P["fast"]:
            for va in vas: e(f"v_add_u32 v{va}, {SLOW}, v{va}")
        for ld in loads: e(ld + (" " + P["x_ifl"] if intra else " " + P["x_xfl"]))
        e(f"s_branch {C}")
        e.label(L)
        mk = lambda i: f"s[{70+2*i}:{71+2*i}]" if i < 5 else "s[58:59]"
        for i, ld in enumerate(loads):
            if len(loads) == 1:
                e("s_mov_b64 exec, vcc"); e(ld + (" " + P["x_ifl"] if intra else " " + P["x_xfl"]))
            else:
                S = e.newlabel("gs")
                e(f"s_mov_b64 exec, {mk(i)}\ns_cbranch_execz {S}")
                e(ld + (" " + P["x_ifl"] if intra else " " + P["x_xfl"]))
                e.label(S)
        e("s_mov_b64 exec, -1")
        e.label(C)
        e("s_waitcnt vmcnt(0)")
        if diag and fstamp:
            F = e.newlabel("gf")
            e(f"s_cmp_lg_u32 s53, 0\ns_cbranch_scc1 {F}"); stamp(fstamp); e.label(F)
        for i, t in enumerate(tags):
            e(f"v_cmp_ne_u32_e64 {mk(i)}, s7, v{t}")
        e(f"s_or_b64 vcc, {mk(0)}, {mk(min(1, len(tags)-1))}")
        for i in range(2, len(tags)): e(f"s_or_b64 vcc, vcc, {mk(i)}")
        e(f"s_cbranch_scc0 {D}")
        e("s_add_u32 s53, s53, 1")
        if intra and P["fast"]:
            e(f"s_cmp_eq_u32 s53, {P['NFAST']}\ns_cselect_b32 s54, {SLOW}, 0")
            for va in vas: e(f"v_add_u32 v{va}, s54, v{va}")
        if P["sleep"]: e(f"s_sleep {P['sleep']}")
        e(f"s_cmp_lt_u32 s53, {P['SPINMAX']}\ns_cbranch_scc1 {L}")
        e.label(D)
        if diag and fstamp: e(f"v_writelane_b32 v31, s53, {fstamp+1}")
    def pgather(loads, tags, sets, vaddr, intra, cont, pre=None):
        R = len(sets); n = len(loads(0))
        if R == 1:
            if pre: pre(0)
            gather(loads(sets[0]), tags(sets[0]), vaddr, intra); cont(sets[0]); return
        L = e.newlabel("pg"); D = e.newlabel("pgd"); OK = [e.newlabel("pgo") for _ in sets]
        e("s_mov_b32 s53, 0")
        if intra and not P["fast"]: e(f"v_add_u32 v{vaddr}, {SLOW}, v{vaddr}")
        for r in sets[:-1]:
            for ld in loads(r): e(ld + (" " + P["x_ifl"] if intra else " " + P["x_xfl"]))
            if pre and r == sets[0]: pre(n)
            else: e(f"s_sleep {P['PSLEEP']}")
        e.label(L)
        for i, r in enumerate(sets):
            for ld in loads(sets[i - 1]): e(ld + (" " + P["x_ifl"] if intra else " " + P["x_xfl"]))
            e(f"s_waitcnt vmcnt({(R-1)*n})")
            tg = tags(r)
            e(f"v_cmp_ne_u32 vcc, s7, v{tg[0]}")
            for j, t in enumerate(tg[1:]):
                pr = 56 + 2 * (j & 1)
                e(f"v_cmp_ne_u32_e64 s[{pr}:{pr+1}], s7, v{t}\ns_or_b64 vcc, vcc, s[{pr}:{pr+1}]")
            if len(tg) == 1: e("s_or_b64 vcc, vcc, vcc")
            e(f"s_cbranch_scc0 {OK[i]}")
        e("s_add_u32 s53, s53, 1")
        if intra and P["fast"]:
            e(f"s_cmp_eq_u32 s53, {P['NFAST']}\ns_cselect_b32 s54, {SLOW}, 0\nv_add_u32 v{vaddr}, s54, v{vaddr}")
        e(f"s_cmp_lt_u32 s53, {P['SPINMAX']}\ns_cbranch_scc1 {L}")
        for i, r in enumerate(sets):
            e.label(OK[i]); cont(r)
            if i < R - 1: e(f"s_branch {D}")
        e.label(D)
    def prepoll(soff, offs):
        if not P["prepoll"]: return
        L = e.newlabel("pp"); D = e.newlabel("ppd")
        e(f"s_add_u32 s70, s40, s{soff}\ns_addc_u32 s71, s41, 0\ns_mov_b32 s53, 0")
        e.label(L)
        for i, o in enumerate(offs): e(f"s_load_dword s{72+i}, s[70:71], {o} glc")
        e("s_waitcnt lgkmcnt(0)")
        e("s_xor_b32 s54, s72, s7")
        for i in range(1, len(offs)): e(f"s_xor_b32 s55, s{72+i}, s7\ns_or_b32 s54, s54, s55")
        e(f"s_cmp_eq_u32 s54, 0\ns_cbranch_scc1 {D}")
        e(f"s_add_u32 s53, s53, 1\ns_cmp_lt_u32 s53, {P['NFAST']}\ns_cbranch_scc1 {L}")
        e.label(D)
    def prewrite8(soff, who, flags=""):
        L = e.newlabel("pw")
        e(f"""s_cmp_lg_u32 s6, {who}
              s_cbranch_scc1 {L}
              buffer_load_dwordx2 v[20:21], v30, s[44:47], s{soff} offen {P["prf"]}""")
        if P["prf"] == "nt":
            e(f"""s_xor_b32 s54, s7, 1
                  v_mov_b32 v97, s54
                  buffer_store_dwordx2 v[96:97], v30, s[44:47], s{soff} offen""")
        e.label(L)
    def publish(st, intra, soff):
        if intra:
            if P["fast"]: e(st.format(so=f"s{soff}"))
            if P.get("x_noslow"): return
            e(f"s_add_u32 s54, s{soff}, {SLOW}")
            e(st.format(so="s54") + " sc1")
        else:
            e(st.format(so=f"s{soff}") + " sc1")
    def blk_load(sr, vo, so, RS, r0, D, barrier_at=False, split=8, tiles=range(8), dwait=None):
        for t in tiles:
            e(f"buffer_load_dwordx4 v[{r0+4*t}:{r0+4*t+3}], v{vo}, s[{sr}:{sr+3}], s{so} offen nt")
            if t < 7: e(f"s_add_u32 s{so}, s{so}, {8*RS}")
            if barrier_at and t == D - 1:
                aw_consts()
                start_barrier()
                if diag: e("v_writelane_b32 v31, s80, 0")
            if t == split - 1 and t < 7: lds_wait(1, C_VI, 4)
            if t >= D - 1 and t < 7 and t < split - 1: e(f"s_waitcnt vmcnt({(dwait or D)-1})")
    def blk_voff(vo, RS):
        e(f"v_lshrrev_b32 v{vo}, 3, v0\nv_mul_u32_u24 v{vo}, {RS}, v{vo}\nv_and_b32 v2, 7, v0\nv_lshl_add_u32 v{vo}, v2, 4, v{vo}")
    def masks():
        e("""v_and_b32 v2, 1, v0
             v_cmp_eq_u32 vcc, 1, v2
             v_mov_b32 v3, 0xffff
             v_mov_b32 v8, 0xffff0000
             v_cndmask_b32 v3, v3, v8, vcc
             v_bfe_u32 v2, v0, 1, 2""")
        for j in range(4):
            e(f"v_cmp_eq_u32 vcc, {j}, v2\nv_cndmask_b32 v{4+j}, 0, v3, vcc")
    def aw_consts():
        masks()
        e("""v_lshrrev_b32 v3, 3, v0
             v_lshlrev_b32 v3, 2, v3
             v_lshlrev_b32 v29, 2, v0
             v_lshlrev_b32 v30, 3, v0
             v_mov_b32 v1, 0
             v_and_b32 v2, 7, v0
             v_lshlrev_b32 v28, 5, v2
             v_and_b32 v2, 16, v0
             v_add_u32 v28, v28, v2
             v_and_b32 v2, 32, v0
             v_lshl_add_u32 v28, v2, 3, v28
             s_lshl_b32 s54, s6, 9
             v_add_u32 v28, s54, v28
             s_mov_b32 s60, 0x00ff00ff
             s_mov_b32 s61, 0xff00ff00""")
    def blk_mfma(hd, r0, first, vb=3, step=32):
        for t in range(8): e(f"ds_bpermute_b32 v{8+t}, v{vb}, v{hd} offset:{step*t}")
        for t in range(8):
            e(f"s_waitcnt lgkmcnt({7-t})")
            a = 96 + 4 * t
            for j in range(4): e(f"v_and_b32 v{a+j}, v{8+t}, v{4+j}")
            if t > 0:
                c = "0" if (first and t == 1) else "v[24:27]"
                e(f"v_mfma_f32_16x16x32_bf16 v[24:27], v[{a-4}:{a-1}], v[{r0+4*t-4}:{r0+4*t-1}], {c}")
        e(f"v_mfma_f32_16x16x32_bf16 v[24:27], v[124:127], v[{r0+28}:{r0+31}], v[24:27]")
    def blk_prep(hd, vb=3, step=32):
        for t in range(8): e(f"ds_bpermute_b32 v{8+t}, v{vb}, v{hd} offset:{step*t}")
        for t in range(8):
            e(f"s_waitcnt lgkmcnt({7-t})")
            for j in range(4): e(f"v_and_b32 v{96+4*t+j}, v{8+t}, v{4+j}")
    def blk_run(r0, nout=0):
        for t in range(8):
            e(f"s_waitcnt vmcnt({7-t+nout})")
            c = "0" if t == 0 else "v[24:27]"
            e(f"v_mfma_f32_16x16x32_bf16 v[24:27], v[{96+4*t}:{99+4*t}], v[{r0+4*t}:{r0+4*t+3}], {c}")
    def blk_reduce(part, cnt, n, notlast):
        e(f"""v_mov_b32 v2, 1
              s_mov_b64 exec, s[60:61]
              ds_write_b128 v28, v[24:27] offset:{part}
              s_mov_b64 exec, 1
              ds_add_rtn_u32 v2, v1, v2 offset:{cnt}
              s_mov_b64 exec, -1
              s_waitcnt lgkmcnt(0)
              v_readfirstlane_b32 s54, v2""")
        nmax = n if isinstance(n, int) else 5
        if isinstance(n, int): e(f"s_cmp_lg_u32 s54, {n-1}")
        else: e(f"s_add_u32 s54, s54, 1\ns_cmp_lg_u32 s54, {n}")
        e(f"s_cbranch_scc1 {notlast}")
        u = part // 256
        for w in range(nmax):
            e(f"ds_read2st64_b32 v[{8+2*w}:{9+2*w}], v29 offset0:{u+2*w} offset1:{u+2*w+1}")
        if not isinstance(n, int):
            e(f"s_cmp_eq_u32 {n}, 5\ns_cselect_b32 s54, -1, 0")
        for w in range(nmax):
            e(f"s_waitcnt lgkmcnt({nmax-1-w})")
            e(f"v_add_f32 v{8+2*w}, v{8+2*w}, v{9+2*w}")
            if not isinstance(n, int) and w == 4: e("v_and_b32 v16, s54, v16")
            if w > 0: e(f"v_add_f32 v8, v8, v{8+2*w}")
    def pack4(a, b, c, d):
        e(f"v_perm_b32 v{a}, v{a}, v{d}, s62\nv_perm_b32 v{b}, v{b}, v{d}, s63\nv_perm_b32 v{c}, v{c}, v{d}, s64\nv_mov_b32 v{a+3}, s7")
    def pack_consts():
        e("s_mov_b32 s62, 0x07060501\ns_mov_b32 s63, 0x07060502\ns_mov_b32 s64, 0x07060503\ns_mov_b32 s65, 0x0c04000c")
    def publish_cols_f16p(soff):
        e("""v_mov_b32 v10, v8
             v_permlane32_swap_b32 v8, v10
             v_mov_b32 v9, v8
             v_mov_b32 v11, v10
             v_permlane16_swap_b32 v8, v9
             v_permlane16_swap_b32 v10, v11""")
        pack4(8, 9, 10, 11)
        e("s_mov_b64 exec, 0xffff")
        publish("buffer_store_dwordx4 v[8:11], v27, s[44:47], {so} offen", False, soff)
        e("s_mov_b64 exec, -1")
    def unpack_reduce(n, base=8, scale=None):
        for k in range(n):
            b = base + 4 * k
            e(f"v_perm_b32 v{b+3}, v{b+1}, v{b}, s65\nv_lshl_or_b32 v{b+3}, v{b+2}, 24, v{b+3}")
        if scale:
            for i in range(4): e(f"v_mul_f32 v{base+i}, v{base+i}, v{scale}")
        for k in range(1, n):
            for i in range(4):
                if scale: e(f"v_fmac_f32 v{base+i}, v{base+4*k+i}, v{scale+k}")
                else: e(f"v_add_f32 v{base+i}, v{base+i}, v{base+4*k+i}")
        b = base
        e(f"""v_permlane32_swap_b32 v{b}, v{b+2}
              v_permlane32_swap_b32 v{b+1}, v{b+3}
              v_add_f32 v{b}, v{b}, v{b+2}
              v_add_f32 v{b+1}, v{b+1}, v{b+3}
              v_permlane16_swap_b32 v{b}, v{b+1}
              v_add_f32 v{b}, v{b}, v{b+1}""")
    def ln_finish(x, mean, var, out, t):
        e(f"""v_cvt_pk_bf16_f32 v{t}, v{mean}, v{var}
              v_lshlrev_b32 v{mean}, 16, v{t}
              v_and_b32 v{var}, 0xffff0000, v{t}
              v_add_f32 v{var}, {hex(f2u(1e-5))}, v{var}
              v_sub_f32 v{out}, v{x}, v{mean}
              v_cvt_pk_bf16_f32 v{t}, v{out}, v{var}
              v_and_b32 v{var}, 0xffff0000, v{t}
              v_sqrt_f32 v{var}, v{var}
              v_lshlrev_b32 v{out}, 16, v{t}""")
        bf16r(var, var)
        e(f"v_rcp_f32 v{var}, v{var}\nv_mul_f32 v{out}, v{out}, v{var}")
        bf16r(out, out)
    def silu_dup(x, t):
        e(f"""v_max_f32 v{x}, 0xc3000000, v{x}
              v_mul_f32 v{t}, {hex(f2u(-1.4426950408889634))}, v{x}
              v_exp_f32 v{t}, v{t}
              v_add_f32 v{t}, 1.0, v{t}
              v_min_f32 v{t}, 0x7e800000, v{t}
              v_rcp_f32 v8, v{t}
              v_mul_f32 v9, v{x}, v8
              v_fma_f32 v{x}, -v9, v{t}, v{x}
              v_fma_f32 v{x}, v{x}, v8, v9
              v_cvt_pk_bf16_f32 v{x}, v{x}, v{x}""")
    def x1_from(attn, ga, x):
        bf16r(attn, attn)
        e(f"v_mul_f32 v{attn}, v{ga}, v{attn}")
        bf16r(attn, attn)
        e(f"v_add_f32 v{attn}, v{x}, v{attn}")
        bf16r(attn, attn)
    def kv_soff():
        e("""s_and_b32 s52, s5, 3
             s_lshl_b32 s52, s52, 2
             s_add_u32 s52, s52, s3
             s_lshl_b32 s52, s52, 12""")
    def start_barrier():
        e("""s_waitcnt lgkmcnt(0)
             s_mul_i32 s7, s42, 1664525
             s_add_u32 s7, s7, 1013904223
             s_barrier""")

    e.raw(open("cdna_kernels/" + NAME + ".s.ref").read().split("; Override launch")[0].rstrip("\n"))
    e.raw(f"; @launch grid=(256,1,1) block=(1024,1,1) lds={LDS_BYTES}")
    e.raw('.amdgcn_target "amdgcn-amd-amdhsa--gfx950"\n.text')
    e.raw(f".globl {KNAME}\n.p2align 8\n.type {KNAME},@function\n{KNAME}:")
    if P.get("x_amp") == "karg": e("s_memrealtime s[98:99]")
    e("""s_getpc_b64 s[70:71]
         v_lshlrev_b32 v2, 4, v0
         s_cmp_ge_u32 s2, 256
         s_cbranch_scc1 L_end
         global_load_dwordx4 v[124:127], v2, s[70:71] offset:-4
         s_load_dwordx16 s[16:31], s[0:1], 0
         s_load_dwordx8 s[32:39], s[0:1], 64
         s_load_dwordx2 s[40:41], s[0:1], 104
         v_lshrrev_b32 v1, 6, v0
         v_and_b32 v0, 63, v0
         s_and_b32 s4, s2, 7
         s_lshr_b32 s5, s2, 3
         v_readfirstlane_b32 s3, v1""")
    if diag: e("v_mov_b32 v31, 0")
    e("""s_lshl_b32 s52, s4, 25
         s_lshr_b32 s54, s5, 4
         s_lshl_b32 s54, s54, 24
         s_add_u32 s52, s52, s54
         s_and_b32 s54, s5, 15
         s_lshl_b32 s54, s54, 16
         s_add_u32 s52, s52, s54
         s_add_u32 s52, s52, 0xf00000
         s_waitcnt lgkmcnt(0)
         s_load_dword s42, s[40:41], 0""")
    srd(44, 40, 0x40000000)
    if P.get("x_amp"): e("s_memrealtime s[98:99]" if P["x_amp"] != "karg" else "s_memrealtime s[100:101]")
    if diag:
        e("s_memtime s[98:99]")
        e("s_memrealtime s[80:81]")
    e("""s_cmp_ge_u32 s3, 8
         s_cbranch_scc1 L_aw
         s_cmp_ge_u32 s3, 4
         s_cbranch_scc1 L_vw""")

    srd(8, 18, 65536, "s52")
    e("""v_lshrrev_b32 v1, 4, v0
         v_and_b32 v2, 15, v0
         v_xor_b32 v3, v1, v2
         v_lshlrev_b32 v3, 4, v3
         v_lshl_add_u32 v4, v1, 8, v3
         v_xor_b32 v5, 64, v4""")
    if P.get("x_noswz"): e("v_lshlrev_b32 v4, 4, v0\nv_mov_b32 v5, v4")
    e("""
         s_lshl_b32 s54, s3, 14
         v_xor_b32 v6, 0x80, v4
         v_xor_b32 v7, 0xc0, v4""")
    e(f"s_add_u32 m0, s54, {KIMG}")
    kv_soff()
    DK = P["DK"]
    for u in range(16):
        e(f"buffer_load_dwordx4 v{4+(u&3)}, s[8:11], s52 offen offset:{(u&3)*1024} nt lds")
        if (u & 3) == 3 and u < 15: e("s_addk_i32 s52, 0x4000\ns_addk_i32 m0, 0x1000\ns_and_b32 s52, s52, 0xffff")
        if u == DK - 1:
            start_barrier()
            if diag: e("v_writelane_b32 v31, s80, 0")
        if u >= DK - 1 and u < 15: e(f"s_waitcnt vmcnt({DK-1})")
    e(f"""s_lshl_b32 s54, s3, 2
          v_mov_b32 v29, s54
          v_mov_b32 v30, 1
          ds_write_b32 v29, v30 offset:{C_KI}""")
    stamp(1)
    e(f"""s_lshl_b32 s54, s3, 14
          s_add_u32 s54, s54, {KIMG}
          v_lshl_add_u32 v4, v2, 8, v3
          v_add_u32 v4, s54, v4
          v_xor_b32 v5, 64, v4
          v_xor_b32 v6, 0x80, v4
          v_xor_b32 v7, 0xc0, v4
          s_lshl_b32 s54, s3, 7
          v_and_b32 v28, 31, v0
          v_lshl_add_u32 v24, v28, 2, s54
          v_and_b32 v25, 1, v0
          v_lshlrev_b32 v25, 8, v25
          v_lshl_add_u32 v25, v1, 4, v25
          s_lshl_b32 s54, s3, 9
          v_and_b32 v26, 3, v0
          v_lshlrev_b32 v26, 6, v26
          v_and_b32 v27, 60, v0
          v_add3_u32 v26, v26, v27, s54
          v_and_b32 v27, 32, v0
          v_lshlrev_b32 v27, 6, v27
          v_lshl_add_u32 v27, v28, 4, v27
          s_lshl_b32 s66, s4, 1
          s_lshr_b32 s55, s5, 4
          s_add_u32 s66, s66, s55
          s_lshl_b32 s67, s66, 12
          s_add_u32 s67, s67, s54
          s_add_u32 s67, s67, {H2}
          s_mov_b32 s82, 0xffff0000
          s_mov_b32 s83, 0
          s_mov_b32 s84, 0
          s_mov_b32 s85, 0xffff
          s_mov_b32 s86, 0
          s_mov_b32 s87, 0xffff0000
          s_mov_b32 s88, {hex(LOG2E)}""")
    def k_landed(n):
        e(f"s_waitcnt vmcnt({n})")
        stamp(2)
        if P.get("x_nochain"): e("s_branch L_exit")
        for t in range(4):
            for i in range(4):
                r = 32 + 16 * t + 4 * i
                e(f"ds_read_b128 v[{r}:{r+3}], v{4+i} offset:{t*4096}")
    def q_cont(r):
        e(f"v_mov_b32 v4, v{r}\nv_mov_b32 v5, v{r+2}\nv_mov_b32 v6, v{r}\nv_mov_b32 v7, v{r+2}")
    pgather(lambda r: [f"buffer_load_dwordx4 v[{r}:{r+3}], v27, s[44:47], s67 offen"], lambda r: [r + 1, r + 3],
            [8, 12, 16, 20][:P["RQ"]], 27, True, q_cont, k_landed)
    stamp(3)
    e(f"""v_permlane32_swap_b32 v4, v6
          v_permlane32_swap_b32 v5, v7
          v_mov_b32 v1, 0
          v_add_f32 v4, v4, v6
          v_add_f32 v5, v5, v7
          v_cvt_pk_bf16_f32 v4, v4, v5
          ds_write_b32 v24, v4 offset:{QS}
          s_mov_b64 exec, 1
          ds_add_u32 v1, v30 offset:{C_Q}
          s_mov_b64 exec, -1""")
    lds_wait(1, C_Q, 4, sleep=0)
    for i in range(4): e(f"ds_read_b128 v[{96+4*i}:{99+4*i}], v25 offset:{QS+64*i}")
    for i in range(4):
        e(f"s_waitcnt lgkmcnt({3-i})")
        for t in range(4):
            r = 32 + 16 * t + 4 * i; d = 112 + 4 * t
            c = "0" if i == 0 else f"v[{d}:{d+3}]"
            e(f"v_mfma_f32_16x16x32_bf16 v[{d}:{d+3}], v[{96+4*i}:{99+4*i}], v[{r}:{r+3}], {c}")
    for h in range(2):
        e(f"v_cndmask_b32_e64 v{32+h}, v{112+h}, v{116+h}, s[82:83]")
    for h in range(2):
        e(f"v_cndmask_b32_e64 v{32+h}, v{32+h}, v{120+h}, s[84:85]")
    for h in range(2):
        e(f"v_cndmask_b32_e64 v{32+h}, v{32+h}, v{124+h}, s[86:87]")
    SC = hex(f2u(128 ** -0.5))
    e(f"""v_cvt_pk_bf16_f32 v34, v32, v33
          v_lshlrev_b32 v32, 16, v34
          v_and_b32 v33, 0xffff0000, v34
          v_mul_f32 v32, {SC}, v32
          v_mul_f32 v33, {SC}, v33
          v_cvt_pk_bf16_f32 v34, v32, v33
          v_lshlrev_b32 v32, 16, v34
          v_and_b32 v33, 0xffff0000, v34
          v_mov_b32 v34, v32
          v_mov_b32 v35, v33""")
    red("v_max_f32", [34, 35])
    e(f"""v_lshlrev_b32 v36, 1, v29
          v_mov_b32 v1, 0
          s_mov_b32 s58, 0
          s_mov_b32 s59, 0x80000000
          s_mov_b64 exec, s[58:59]
          ds_write_b64 v36, v[34:35] offset:{MX}
          ds_add_u32 v1, v30 offset:{C_M}
          s_mov_b64 exec, -1""")
    lds_wait(1, C_M, 4, sleep=0)
    e(f"""ds_read_b128 v[40:43], v1 offset:{MX}
          ds_read_b128 v[44:47], v1 offset:{MX+16}
          s_waitcnt lgkmcnt(0)
          v_max3_f32 v34, v40, v42, v44
          v_max3_f32 v35, v41, v43, v45
          v_max_f32 v34, v34, v46
          v_max_f32 v35, v35, v47
          v_sub_f32 v37, v32, v34
          v_sub_f32 v38, v33, v35
          v_mul_f32 v37, s88, v37
          v_mul_f32 v38, s88, v38
          v_exp_f32 v37, v37
          v_exp_f32 v38, v38
          v_lshrrev_b32 v36, 16, v34
          v_cvt_pk_bf16_f32 v32, v37, v37
          v_cvt_pk_bf16_f32 v33, v38, v38
          ds_write_b32 v26, v32 offset:{PS}
          ds_write_b32 v26, v33 offset:{PS+256}
          v_or_b32 v36, v36, v35
          v_lshlrev_b32 v39, 2, v29""")
    red("v_add_f32", [37, 38])
    e(f"""s_mov_b64 exec, s[58:59]
          ds_write_b96 v39, v[36:38] offset:{ML}
          ds_write_b32 v29, v30 offset:{C_P}
          s_mov_b64 exec, -1""")
    stamp(6)
    e("""s_cmp_lg_u32 s3, 0
         s_cbranch_scc1 L_exit
         s_cmp_ge_u32 s5, 27
         s_cbranch_scc1 L_exit
         s_mov_b32 s6, 8
         s_waitcnt vmcnt(0)""")
    aw_consts()
    e("""s_cmp_ge_u32 s5, 9
         s_cbranch_scc1 L_gu_post""")
    e("s_branch L_wd_9")

    e.label("L_vw")
    CODE_KB = P.get("code_kb", 16)
    e("""s_sub_u32 s3, s3, 4
         v_lshlrev_b32 v27, 4, v0""")
    srd(8, 20, 65536, "s52")
    kv_soff()
    masks()
    pack_consts()
    e(f"""s_lshl_b32 s54, s3, 2
          v_mov_b32 v29, s54
          v_mov_b32 v1, 0
          v_bfe_u32 v2, v0, 3, 1
          v_lshlrev_b32 v28, 8, v2
          v_and_b32 v3, 48, v0
          v_lshl_add_u32 v28, v3, 2, v28
          s_lshl_b32 s54, s3, 9
          v_add_u32 v28, s54, v28
          v_and_b32 v3, 32, v0
          v_lshl_add_u32 v30, v2, 4, v3
          v_and_b32 v3, 7, v0
          v_lshl_add_u32 v30, v3, 1, v30
          v_bfe_u32 v3, v0, 4, 1
          v_add_u32 v30, v30, v3
          v_lshlrev_b32 v30, 4, v30
          s_lshl_b32 s54, s3, 10
          v_add_u32 v30, s54, v30
          s_lshl_b32 s66, s4, 5
          s_add_u32 s66, s66, s5
          s_lshl_b32 s68, s66, 7
          s_add_u32 s68, s68, {HML}
          s_lshl_b32 s66, s66, 10
          s_add_u32 s66, s66, {H3}""")
    start_barrier()
    if diag: e("v_writelane_b32 v31, s80, 0")
    if P["prewrite"] and P["fast"]:
        e("""s_cmp_lg_u32 s3, 0
             s_cbranch_scc1 L_vw_nopw
             buffer_load_dwordx4 v[8:11], v27, s[44:47], s66 offen PRF
             s_mov_b64 exec, 0xff
             buffer_load_dwordx4 v[8:11], v27, s[44:47], s68 offen PRF
             s_mov_b64 exec, -1""".replace("PRF", P["prf"]))
        if P["prf"] == "nt":
            e("""s_xor_b32 s54, s7, 1
                 v_mov_b32 v15, s54
                 buffer_store_dwordx4 v[12:15], v27, s[44:47], s66 offen
                 s_mov_b64 exec, 0xff
                 buffer_store_dwordx4 v[12:15], v27, s[44:47], s68 offen
                 s_mov_b64 exec, -1""")
        e.label("L_vw_nopw")
    lds_wait(29, C_KI, 1)
    stamp(1)
    DV = P["DV"]
    for u in range(16):
        e(f"buffer_load_dwordx4 v[{32+4*u}:{35+4*u}], v27, s[8:11], s52 offen offset:{(u&3)*1024} nt")
        if (u & 3) == 3 and u < 15: e("s_addk_i32 s52, 0x4000\ns_and_b32 s52, s52, 0xffff")
        if u >= DV - 1 and u < 15: e(f"s_waitcnt vmcnt({DV-1})")
    e(f"""v_mov_b32 v2, 1
          s_mov_b64 exec, 1
          ds_add_u32 v1, v2 offset:{C_VI}
          s_mov_b64 exec, -1""")
    stamp(2)
    if P.get("x_nochain"):
        e("s_waitcnt vmcnt(0)"); stamp(4); e("s_branch L_exit")
    lds_wait(29, C_P, 1)
    stamp(3)
    for i in range(4): e(f"ds_read_b128 v[{8+4*i}:{11+4*i}], v28 offset:{PS+16*i}")
    for u in range(16):
        if u % 4 == 0: e(f"s_waitcnt lgkmcnt({3-u//4})")
        a = 96 + 4 * (u % 8)
        for j in range(4): e(f"v_and_b32 v{a+j}, v{8+u}, v{4+j}")
        if u > 0:
            pa = 96 + 4 * ((u - 1) % 8)
            if 15 - (u - 1) < DV: e(f"s_waitcnt vmcnt({15-(u-1)})")
            c = "0" if u == 1 else "v[24:27]"
            if u == 1: e("v_mov_b32 v3, v27")
            e(f"v_mfma_f32_16x16x32_bf16 v[24:27], v[{pa}:{pa+3}], v[{32+4*(u-1)}:{35+4*(u-1)}], {c}")
    e("s_waitcnt vmcnt(0)")
    stamp(4)
    e(f"""v_mfma_f32_16x16x32_bf16 v[24:27], v[124:127], v[92:95], v[24:27]
          v_mov_b32 v2, 1
          ds_write_b128 v30, v[24:27] offset:{PVP}
          s_mov_b64 exec, 1
          ds_add_rtn_u32 v2, v1, v2 offset:{C_PV}
          s_mov_b64 exec, -1
          s_waitcnt lgkmcnt(0)
          v_readfirstlane_b32 s54, v2
          s_cmp_lg_u32 s54, 3
          s_cbranch_scc1 L_exit""")
    for i in range(4): e(f"ds_read_b128 v[{8+4*i}:{11+4*i}], v3 offset:{PVP+1024*i}")
    for i in range(4): e(f"ds_read_b128 v[{32+4*i}:{35+4*i}], v1 offset:{ML+16*i}")
    for k in range(1, 4):
        e(f"s_waitcnt lgkmcnt({7-k})")
        for i in range(4): e(f"v_add_f32 v{8+i}, v{8+i}, v{8+4*k+i}")
    pack4(8, 9, 10, 11)
    if P["fast"]: e("buffer_store_dwordx4 v[8:11], v3, s[44:47], s66 offen")
    e("""s_waitcnt lgkmcnt(0)
         v_add_f32 v33, v33, v37
         v_add_f32 v34, v34, v38
         v_add_f32 v41, v41, v45
         v_add_f32 v42, v42, v46
         v_mov_b32 v35, s7
         v_add_f32 v33, v33, v41
         v_add_f32 v34, v34, v42
         s_mov_b64 exec, 0xff""")
    if P["fast"]: e("buffer_store_dwordx4 v[32:35], v3, s[44:47], s68 offen")
    e(f"s_mov_b64 exec, -1\nv_mov_b32 v2, 1\nds_write_b32 v1, v2 offset:{C_PUB}")
    stamp(5)
    if P["fast"]:
        e("s_cmp_ge_u32 s5, 9\ns_cbranch_scc1 L_vw_slow")
        lds_wait(1, C_W, 1, sleep=2, bound=48)
        e.label("L_vw_slow")
    if not P.get("x_noslow"):
        e(f"""s_add_u32 s68, s68, {SLOW}
              s_add_u32 s66, s66, {SLOW}
              buffer_store_dwordx4 v[8:11], v3, s[44:47], s66 offen sc1
              s_mov_b64 exec, 0xff
              buffer_store_dwordx4 v[32:35], v3, s[44:47], s68 offen sc1
              s_mov_b64 exec, -1""")
    e("s_branch L_exit")

    e.label("L_aw")
    e("s_sub_u32 s6, s3, 8")
    if P.get("x_noaw"):
        e("v_lshlrev_b32 v30, 3, v0\nv_mov_b32 v8, 0\nv_mov_b32 v9, 0")
        e(f"ds_write_b64 v30, v[8:9] offset:{STAT}")
        start_barrier(); e("s_branch L_exit")
    e("""s_cmp_lt_u32 s5, 9
         s_cbranch_scc1 L_wd
         s_cmp_lt_u32 s5, 25
         s_cbranch_scc1 L_q""")
    def zero_lds():
        Lz = e.newlabel("z")
        e(f"""s_cmp_lg_u32 s6, 7
              s_cbranch_scc1 {Lz}
              v_mov_b32 v8, 0
              v_mov_b32 v9, 0
              ds_write_b64 v30, v[8:9] offset:{STAT}""")
        e.label(Lz)
    e(f"""s_mul_i32 s66, s4, 7
          s_add_u32 s66, s66, s5
          s_sub_u32 s66, s66, 25
          s_mul_i32 s67, s66, 0x5556
          s_lshr_b32 s67, s67, 16
          s_mul_i32 s54, s67, 3
          s_sub_u32 s68, s66, s54
          s_mul_i32 s69, s68, 3
          s_add_u32 s69, s69, s6""")
    srd(8, 36, 576 * 6912)
    srd(48, 34, 1152)
    blk_voff(26, 6912)
    e("""s_cmp_lt_u32 s66, 54
         s_cselect_b32 s55, s6, 7
         s_cmp_ge_u32 s55, 3
         s_cbranch_scc1 L_a_skip""")
    e(f"""s_mul_i32 s52, s69, {64*6912}
          s_lshl_b32 s54, s67, 7
          s_add_u32 s52, s52, s54
          s_lshl_b32 s54, s69, 7
          v_lshlrev_b32 v2, 1, v0
          buffer_load_ushort v25, v2, s[48:51], s54 offen""")
    blk_load(8, 26, 52, 6912, 32, P["DE"])
    aw_consts()
    start_barrier()
    if diag: e("v_writelane_b32 v31, s80, 0")
    e(f"""s_mul_i32 s52, s68, {1152*8}
          s_lshl_b32 s54, s67, 9
          s_add_u32 s52, s52, s54
          s_add_u32 s52, s52, {H1}
          s_waitcnt vmcnt(8)
          v_lshlrev_b32 v25, 16, v25""")
    silu_dup(25, 2)
    blk_prep(25)
    blk_run(32)
    stamp(1)
    blk_reduce(PARTE, C_E, 3, "L_a_done")
    e("v_mov_b32 v9, s7")
    publish("buffer_store_dwordx2 v[8:9], v30, s[44:47], {so} offen", False, 52)
    stamp(2)
    e("s_branch L_a_done")
    e.label("L_a_skip")
    aw_consts()
    zero_lds()
    start_barrier()
    if diag: e("v_writelane_b32 v31, s80, 0")
    e.label("L_a_done")
    e("s_cmp_lt_u32 s5, 27\ns_cbranch_scc1 L_gu_post")
    e("""s_mul_i32 s66, s4, 5
         s_add_u32 s66, s66, s5
         s_sub_u32 s66, s66, 27
         s_cmp_ge_u32 s66, 36
         s_cbranch_scc1 L_exit""")
    blk_voff(26, 6912)
    e(f"""s_mul_i32 s52, s6, {64*6912}
          s_lshl_b32 s67, s66, 7
          s_add_u32 s67, s67, {18*128}
          s_add_u32 s52, s52, s67
          s_add_u32 s67, s67, {8*64*6912}
          s_lshl_b32 s54, s6, 7
          v_lshlrev_b32 v2, 1, v0
          buffer_load_ushort v22, v2, s[48:51], s54 offen
          buffer_load_ushort v23, v2, s[48:51], 0 offen offset:1024""")
    e(f"""s_mul_i32 s54, s6, {8*6912}
          s_add_u32 s67, s67, s54
          s_lshl_b32 s54, s6, 5
          v_add_u32 v21, s54, v3
          s_waitcnt vmcnt(0)
          v_lshlrev_b32 v22, 16, v22
          v_lshlrev_b32 v23, 16, v23""")
    silu_dup(22, 2)
    silu_dup(23, 2)
    blk_prep(22)
    e("ds_bpermute_b32 v8, v21, v23\ns_waitcnt lgkmcnt(0)")
    for j in range(4): e(f"v_and_b32 v{36+j}, v8, v{4+j}")
    if P["mod_gate"] == "K": lds_wait(1, C_KI, 1)
    elif P["mod_gate"] == "V": lds_wait(1, C_VI, 4)
    blk_load(8, 26, 52, 6912, 64, P["DMOD"], split=P["NM1"])
    if P["NM1"] >= 8: e(f"s_waitcnt vmcnt({P['DMOD']-1})")
    e("buffer_load_dwordx4 v[32:35], v26, s[8:11], s67 offen nt")
    blk_run(64, 1)
    e("s_waitcnt vmcnt(0)\nv_mfma_f32_16x16x32_bf16 v[24:27], v[36:39], v[32:35], v[24:27]")
    stamp(3)
    blk_reduce(PARTP, C_PP, 8, "L_exit")
    bf16r(8, 8)
    e(f"""s_cmp_ge_u32 s66, 27
          s_cbranch_scc1 L_final
          s_lshl_b32 s52, s66, 9
          s_add_u32 s52, s52, {HMOD}
          v_mov_b32 v9, s7""")
    publish("buffer_store_dwordx2 v[8:9], v30, s[44:47], {so} offen", False, 52)
    stamp(4)
    e("s_branch L_exit")
    e.label("L_final")
    stamp(4)
    if P.get("x_nochain"): e("s_branch L_exit")
    pack_consts()
    srd(48, 16, 1152)
    e(f"""s_sub_u32 s66, s66, 27
          v_mov_b32 v24, v8
          s_lshl_b32 s54, s66, 7
          v_lshlrev_b32 v23, 1, v0
          v_add_u32 v23, s54, v23
          buffer_load_ushort v25, v23, s[48:51], 0 offen
          s_lshl_b32 s67, s66, 9
          s_add_u32 s67, s67, {HMOD}
          s_lshl_b32 s68, s66, 11
          s_add_u32 s69, s68, {H6}
          s_add_u32 s68, s68, {H4}
          v_lshlrev_b32 v27, 4, v0""")
    if P.get("x_amp") == "mod": e("s_memrealtime s[100:101]")
    if P.get("x_gudelay"):
        Ld = e.newlabel("dl")
        e("v_readlane_b32 s55, v31, 0")
        e(f"s_add_u32 s55, s55, {P['x_gudelay']}")
        e.label(Ld)
        e(f"s_sleep 2\ns_memrealtime s[80:81]\ns_waitcnt lgkmcnt(0)\ns_sub_u32 s54, s55, s80\ns_cmp_gt_i32 s54, 0\ns_cbranch_scc1 {Ld}")
    lds_wait(1, C_PUB, 1)
    if P.get("x_amp") == "pub": e("s_memrealtime s[100:101]")
    gather(["buffer_load_dwordx2 v[20:21], v30, s[44:47], s67 offen"], [21], 30, False)
    gather([f"buffer_load_dwordx4 v[{8+4*k}:{11+4*k}], v27, s[44:47], s68 offen offset:{1024*k}" for k in range(2)], [11, 15], 27, False)
    unpack_reduce(2)
    e("v_lshlrev_b32 v25, 16, v25")
    x1_from(8, 20, 25)
    e("v_mov_b32 v25, v8")
    srd(48, 38, 1152)
    stamp(5)
    if P.get("x_amp") == "x1": e("s_memrealtime s[100:101]")
    gather([f"buffer_load_dwordx4 v[{8+4*k}:{11+4*k}], v27, s[44:47], s69 offen offset:{1024*k}" for k in range(2)], [11, 15], 27, False)
    stamp(6)
    unpack_reduce(2)
    bf16r(8, 8)
    e("v_mul_f32 v8, v24, v8")
    bf16r(8, 8)
    e("""v_add_f32 v8, v25, v8
         v_cvt_pk_bf16_f32 v8, v8, v8
         buffer_store_short v8, v23, s[48:51], 0 offen
         s_cmp_lg_u32 s66, 0
         s_cbranch_scc1 L_exit
         v_mov_b32 v9, s7
         s_mov_b64 exec, 1
         buffer_store_dword v9, v1, s[44:47], 0 offen sc1
         s_mov_b64 exec, -1""")
    if P.get("x_amp"):
        if P["x_amp"] == "end": e("s_memrealtime s[100:101]")
        e("""s_memrealtime s[80:81]
             s_waitcnt lgkmcnt(0)
             s_sub_u32 s54, s100, s98
             s_min_u32 s54, s54, 20000
             s_mul_i32 s54, s54, 4
             s_add_u32 s54, s54, s80""")
        e.label("L_amp")
        e("""s_memrealtime s[80:81]
             s_waitcnt lgkmcnt(0)
             s_sub_u32 s55, s54, s80
             s_cmp_gt_i32 s55, 0
             s_cbranch_scc1 L_amp""")
    e("s_branch L_exit")

    e.label("L_q")
    e("""s_sub_u32 s66, s5, 9
         s_and_b32 s67, s66, 1
         s_lshr_b32 s68, s66, 1
         s_mul_i32 s69, s67, 5
         s_add_u32 s69, s69, s6
         s_sub_u32 s89, 5, s67""")
    srd(8, 22, 576 * 8192)
    srd(48, 16, 1152)
    blk_voff(26, 8192)
    e("s_cmp_ge_u32 s6, s89\ns_cbranch_scc1 L_a_skip")
    e(f"""s_lshl_b32 s52, s69, 19
          s_lshl_b32 s54, s4, 10
          s_add_u32 s52, s52, s54
          s_lshl_b32 s54, s68, 7
          s_add_u32 s52, s52, s54
          s_lshl_b32 s54, s69, 7
          v_lshlrev_b32 v2, 1, v0
          buffer_load_ushort v25, v2, s[48:51], s54 offen""")
    for k in range(9): e(f"buffer_load_ushort v{9+k}, v2, s[48:51], 0 offen offset:{128*k}")
    blk_load(8, 26, 52, 8192, 32, P["DQ"], barrier_at=True)
    e("s_waitcnt vmcnt(8)\nv_lshlrev_b32 v25, 16, v25")
    for k in range(9): e(f"v_lshlrev_b32 v{9+k}, 16, v{9+k}")
    e("v_add_f32 v18, v9, v10")
    for k in range(2, 9): e(f"v_add_f32 v18, v18, v{9+k}")
    red("v_add_f32", [18])
    e(f"v_mul_f32 v18, {hex(f2u(1/576))}, v18\nv_readlane_b32 s90, v18, 63\nv_mov_b32 v19, 0")
    for k in range(9): e(f"v_subrev_f32 v{9+k}, s90, v{9+k}\nv_fmac_f32 v19, v{9+k}, v{9+k}")
    red("v_add_f32", [19])
    e(f"v_mul_f32 v19, {hex(f2u(1/576))}, v19\nv_readlane_b32 s91, v19, 63\nv_mov_b32 v18, s90\nv_mov_b32 v19, s91")
    ln_finish(25, 18, 19, 24, 2)
    e(f"""s_lshl_b32 s90, s69, 9
          s_add_u32 s90, s90, {H1}
          s_add_u32 s91, s90, {576*8}
          s_add_u32 s92, s90, {1152*8}
          s_add_u32 s93, s91, {1152*8}
          s_add_u32 s94, s92, {1152*8}
          s_add_u32 s95, s93, {1152*8}
          s_lshl_b32 s52, s4, 13
          s_lshr_b32 s54, s68, 2
          s_lshl_b32 s54, s54, 12
          s_add_u32 s52, s52, s54
          s_lshl_b32 s54, s67, 11
          s_add_u32 s52, s52, s54
          s_and_b32 s54, s68, 3
          s_lshl_b32 s54, s54, 9
          s_add_u32 s52, s52, s54
          s_add_u32 s52, s52, {H2}""")
    if P["prewrite"] and P["fast"]: prewrite8(52, 0)
    stamp(1)
    if P.get("x_nochain"):
        e("s_waitcnt vmcnt(0)"); stamp(2); e("s_branch L_gu_post")
    prepoll(90, [4 + 576 * 8 * k for k in range(6)])
    gather([f"buffer_load_dwordx2 v[{8+2*k}:{9+2*k}], v30, s[44:47], s{90+k} offen" for k in range(6)], [9, 11, 13, 15, 17, 19], 30, False)
    stamp(2)
    e("""v_add_f32 v8, v8, v12
         v_add_f32 v10, v10, v14
         v_add_f32 v8, v8, v16
         v_add_f32 v10, v10, v18
         v_cvt_pk_bf16_f32 v2, v8, v10
         v_lshlrev_b32 v8, 16, v2
         v_and_b32 v10, 0xffff0000, v2
         v_add_f32 v10, 1.0, v10""")
    bf16r(10, 10)
    e("v_mul_f32 v10, v24, v10")
    bf16r(10, 10)
    e("v_add_f32 v10, v10, v8\nv_cvt_pk_bf16_f32 v23, v10, v10")
    blk_mfma(23, 32, True)
    blk_reduce(PARTE, C_E, "s89", "L_gu_post")
    e("v_mov_b32 v9, s7")
    publish("buffer_store_dwordx2 v[8:9], v30, s[44:47], {so} offen", True, 52)
    stamp(3)

    e.label("L_gu_post")
    e("""s_sub_u32 s66, s5, 9
         s_and_b32 s67, s66, 1
         s_lshr_b32 s68, s66, 1
         s_cmp_eq_u32 s67, 0
         s_cselect_b32 s12, s28, s30
         s_cselect_b32 s13, s29, s31
         s_and_b32 s13, s13, 0xffff""")
    e(f"s_mov_b32 s14, {576*9216}\ns_mov_b32 s15, 0x20000")
    srd(48, 16, 1152)
    pack_consts()
    blk_voff(26, 9216)
    e(f"""s_mul_i32 s52, s6, {64*9216}
          s_mul_i32 s54, s4, 9
          s_add_u32 s54, s54, s68
          s_lshl_b32 s54, s54, 7
          s_add_u32 s52, s52, s54
          s_lshl_b32 s54, s6, 7
          v_lshlrev_b32 v2, 1, v0
          buffer_load_ushort v25, v2, s[48:51], s54 offen
          s_lshl_b32 s90, s6, 9
          s_add_u32 s90, s90, {HMOD}
          s_add_u32 s91, s90, {576*8}
          s_add_u32 s92, s91, {576*8}
          s_lshl_b32 s93, s6, 11
          s_add_u32 s93, s93, {H4}
          s_lshl_b32 s94, s4, 1
          s_add_u32 s94, s94, s67
          s_mul_i32 s94, s94, {576*8}
          s_lshl_b32 s54, s68, 9
          s_add_u32 s94, s94, s54
          s_add_u32 s94, s94, {H5}
          v_lshlrev_b32 v27, 4, v0
          s_lshl_b32 s54, s6, 3
          v_mov_b32 v22, s54
          v_and_b32 v23, 15, v0
          v_lshlrev_b32 v23, 3, v23""")
    if P["prewrite"] and P["fast"]: prewrite8(94, 7)
    lds_wait(1, *{"VI": (C_VI, 4), "VI2": (C_VI, 2), "PV": (C_PV, 1), "PUB": (C_PUB, 1), "KI": (C_KI, 1), "NONE": (C_KI, 0)}[P["p_gate"]])
    stamp(8)
    if P["DP9"] != P["DP"]:
        e("s_cmp_eq_u32 s6, 8\ns_cbranch_scc1 L_gu_9")
    blk_load(12, 26, 52, 9216, 64, P["DP"])
    if P["DP9"] != P["DP"]:
        e("s_branch L_gu_10")
        e.label("L_gu_9")
        blk_load(12, 26, 52, 9216, 64, P["DP9"])
        e.label("L_gu_10")
    stamp(9)
    if P["hint"]:
        Lh = e.newlabel("h"); Dh = e.newlabel("hd")
        e(f"""s_mul_i32 s55, s4, 9
              s_add_u32 s55, s55, s6
              s_lshl_b32 s55, s55, 7
              s_add_u32 s55, s55, {HINT}
              s_mov_b32 s53, {P['NFAST']}
              s_mov_b64 exec, 1""")
        e.label(Lh)
        e(f"""buffer_load_dword v2, v1, s[44:47], s55 offen sc1
              s_waitcnt vmcnt(0)
              v_readfirstlane_b32 s54, v2
              s_cmp_eq_u32 s54, s7
              s_cbranch_scc1 {Dh}
              s_sleep {P['hsleep']}
              s_sub_u32 s53, s53, 1
              s_cmp_lg_u32 s53, 0
              s_cbranch_scc1 {Lh}""")
        e.label(Dh)
        e("s_mov_b64 exec, -1")
        if P["hdelay"]: e(f"s_sleep {P['hdelay']}")
        stamp(10)
    if P.get("x_gudelay"):
        Ld = e.newlabel("dl")
        e("v_readlane_b32 s55, v31, 0")
        e(f"s_add_u32 s55, s55, {P['x_gudelay']}")
        e.label(Ld)
        e(f"s_sleep 2\ns_memrealtime s[80:81]\ns_waitcnt lgkmcnt(0)\ns_sub_u32 s54, s55, s80\ns_cmp_gt_i32 s54, 0\ns_cbranch_scc1 {Ld}")
    if P.get("x_nochain"):
        e("s_waitcnt vmcnt(0)"); stamp(10); e("s_branch L_exit")
    gather([f"buffer_load_dwordx2 v[{16+2*k}:{17+2*k}], v30, s[44:47], s{90+k} offen" for k in range(3)] +
           [f"buffer_load_dwordx4 v[{8+4*k}:{11+4*k}], v27, s[44:47], s93 offen offset:{1024*k}" for k in range(2)], [17, 19, 21, 11, 15], 27, False, fstamp=22)
    stamp(11)
    e("v_lshlrev_b32 v25, 16, v25\nv_add_f32 v20, 1.0, v20")
    bf16r(20, 20)
    unpack_reduce(2)
    x1_from(8, 16, 25)
    e("""v_readfirstlane_b32 s54, v8
         v_subrev_f32 v10, s54, v8
         v_mul_f32 v11, v10, v10""")
    red("v_add_f32", [10, 11])
    e(f"""v_mul_f32 v12, v10, v10
          v_mov_b32 v13, s54
          v_fmac_f32 v10, 0x42800000, v13
          v_fmac_f32 v11, 0xbc800000, v12
          s_mov_b32 s58, 0
          s_mov_b32 s59, 0x80000000
          s_mov_b64 exec, s[58:59]
          ds_write_b64 v22, v[10:11] offset:{STAT}
          s_mov_b64 exec, -1
          s_waitcnt lgkmcnt(0)
          s_barrier
          ds_read_b64 v[10:11], v23 offset:{STAT}
          v_cmp_gt_u32 vcc, 72, v23
          s_waitcnt lgkmcnt(0)
          v_mov_b32 v12, v10""")
    red("v_add_f32", [12], full=False)
    e(f"""v_mul_f32 v12, {hex(f2u(1/576))}, v12
          v_fmac_f32 v10, 0xc2800000, v12
          v_cndmask_b32 v10, 0, v10, vcc
          v_mul_f32 v10, v10, v10
          v_fmac_f32 v11, 0x3c800000, v10""")
    red("v_add_f32", [11], full=False)
    e(f"v_mul_f32 v11, {hex(f2u(1/576))}, v11")
    ln_finish(8, 12, 11, 9, 2)
    e("v_mul_f32 v9, v9, v20")
    bf16r(9, 9)
    e("v_add_f32 v9, v9, v18\nv_cvt_pk_bf16_f32 v23, v9, v9")
    stamp(12)
    blk_mfma(23, 64, True)
    blk_reduce(PARTP, C_PP, 9, "L_exit")
    bf16r(8, 8)
    e("v_mov_b32 v9, s7")
    publish("buffer_store_dwordx2 v[8:9], v30, s[44:47], {so} offen", True, 94)
    stamp(13)
    e("s_branch L_exit")

    e.label("L_wd")
    srd(8, 24, 4096 * 1152)
    blk_voff(26, 1152)
    e(f"""s_lshl_b32 s52, s4, 3
          s_add_u32 s52, s52, s6
          s_mul_i32 s52, s52, {64*1152}
          s_lshl_b32 s54, s5, 7
          s_add_u32 s52, s52, s54""")
    aw_consts()
    zero_lds()
    start_barrier()
    if diag: e("v_writelane_b32 v31, s80, 0")
    blk_load(8, 26, 52, 1152, 32, P["DWO"])
    def dn_setup():
        srd(12, 32, 4608 * 1152)
        e(f"""s_mul_i32 s97, s4, 9
              s_add_u32 s97, s97, s6
              s_mul_i32 s97, s97, {64*1152}
              s_lshl_b32 s54, s5, 7
              s_add_u32 s97, s97, s54""")
    dn_setup()
    if P["NDN1"]:
        e(f"s_waitcnt vmcnt({P['DWO']-1})")
        blk_load(12, 26, 97, 1152, 64, P["DWO"], tiles=range(P["NDN1"]))
    pack_consts()
    e(f"""s_lshl_b32 s90, s4, 1
          s_lshr_b32 s54, s6, 2
          s_add_u32 s90, s90, s54
          s_lshl_b32 s90, s90, 14
          s_and_b32 s54, s6, 3
          s_lshl_b32 s54, s54, 8
          s_add_u32 s90, s90, s54
          s_add_u32 s90, s90, {H3}
          v_lshrrev_b32 v25, 4, v0
          v_lshlrev_b32 v25, 12, v25
          v_and_b32 v2, 15, v0
          v_lshl_add_u32 v25, v2, 4, v25
          v_bfe_u32 v24, v0, 3, 2
          v_lshlrev_b32 v24, 6, v24
          v_lshrrev_b32 v2, 5, v0
          v_lshl_add_u32 v100, v2, 2, v24
          s_lshl_b32 s52, s5, 3
          s_add_u32 s52, s52, s4
          s_lshl_b32 s52, s52, 8
          s_add_u32 s52, s52, {H4}""")
    stamp(1)
    if P.get("x_nochain"):
        lds_wait(1, C_VI, 4); e("s_branch L_wd_down")
    e(f"""s_lshl_b32 s94, s4, 1
          s_lshr_b32 s54, s6, 2
          s_add_u32 s94, s94, s54
          s_lshl_b32 s94, s94, 11
          s_add_u32 s94, s94, {HML}
          v_lshrrev_b32 v2, 2, v0
          v_and_b32 v2, 12, v2
          v_add_u32 v2, v2, v0
          v_and_b32 v2, 15, v2
          v_lshlrev_b32 v27, 7, v2
          s_mov_b32 s88, {hex(LOG2E)}
          s_bitcmp1_b32 s6, 1
          s_cselect_b32 s95, 0, 16
          s_cselect_b64 s[82:83], -1, 0""")
    if P["prewrite_x"]:
        e(f"""s_cmp_lg_u32 s6, 0
              s_cbranch_scc1 L_wd_nopw
              s_xor_b32 s54, s7, 1
              v_mov_b32 v11, s54
              v_lshlrev_b32 v2, 4, v0
              s_add_u32 s55, s52, {H6-H4}
              s_mov_b64 exec, 0xffff
              buffer_store_dwordx4 v[8:11], v2, s[44:47], s52 offen sc1
              buffer_store_dwordx4 v[8:11], v2, s[44:47], s55 offen sc1
              s_mov_b64 exec, -1""")
        e.label("L_wd_nopw")
    lds_wait(1, C_PUB, 1)
    stamp(2)
    gather(["buffer_load_dwordx4 v[104:107], v27, s[44:47], s94 offen"] +
           [f"buffer_load_dwordx4 v[{8+4*k}:{11+4*k}], v25, s[44:47], s90 offen offset:{1024*k}" for k in range(4)],
           [107, 11, 15, 19, 23], [25, 27], True, fstamp=20)
    stamp(3)
    e("""v_lshlrev_b32 v104, s95, v104
         v_and_b32 v104, 0xffff0000, v104
         v_cndmask_b32_e64 v105, v105, v106, s[82:83]
         v_mov_b32 v106, v104""")
    for i, st in enumerate(["row_ror:8", "row_ror:4", "row_ror:2", "row_ror:1"]):
        b_ = 8 + 4 * i
        e(f"v_perm_b32 v{b_+3}, v{b_+1}, v{b_}, s65\nv_lshl_or_b32 v{b_+3}, v{b_+2}, 24, v{b_+3}")
        e(f"v_max_f32_dpp v106, v106, v106 {st} row_mask:0xf bank_mask:0xf")
    e("""v_sub_f32 v104, v104, v106
         v_mul_f32 v104, s88, v104
         v_exp_f32 v104, v104
         v_mul_f32 v105, v105, v104""")
    for k, st in enumerate(["row_ror:8", "row_ror:4", "row_ror:2", "row_ror:1"]):
        for i in range(4):
            if k == 0: e(f"v_mul_f32_dpp v{8+i}, v104, v{8+i} row_newbcast:0 row_mask:0xf bank_mask:0xf")
            else: e(f"v_fmac_f32_dpp v{8+i}, v104, v{8+4*k+i} row_newbcast:{k} row_mask:0xf bank_mask:0xf")
        e(f"v_add_f32_dpp v105, v105, v105 {st} row_mask:0xf bank_mask:0xf")
    e("""v_rcp_f32 v105, v105
         v_permlane32_swap_b32 v8, v10
         v_permlane32_swap_b32 v9, v11
         v_add_f32 v8, v8, v10
         v_add_f32 v9, v9, v11
         v_permlane16_swap_b32 v8, v9
         v_add_f32 v8, v8, v9
         v_mul_f32 v8, v8, v105""")
    e("v_cvt_pk_bf16_f32 v23, v8, v8\nv_mov_b32 v22, v100")
    blk_mfma(23, 32, True, vb=22, step=8)
    blk_reduce(PARTE, C_E, 8, "L_wd_wait")
    e("v_lshlrev_b32 v27, 4, v0")
    publish_cols_f16p(52)
    if P["hint"]:
        e(f"""s_mul_i32 s54, s4, 9
              s_add_u32 s54, s54, s5
              s_lshl_b32 s54, s54, 7
              s_add_u32 s54, s54, {HINT}
              s_mov_b64 exec, 1
              buffer_store_dword v11, v1, s[44:47], s54 offen
              s_mov_b64 exec, -1""")
    e(f"v_mov_b32 v2, 1\nds_write_b32 v1, v2 offset:{C_W}")
    stamp(4)
    e("s_branch L_wd_down")
    e.label("L_wd_9")
    dn_setup()
    pack_consts()
    blk_voff(26, 1152)
    blk_load(12, 26, 97, 1152, 64, 2, tiles=range(P["NDN1"]))
    e.label("L_wd_wait")
    if P["dn_gate"]: lds_wait(1, C_W, 1)
    e.label("L_wd_down")
    blk_voff(26, 1152)
    blk_load(12, 26, 97, 1152, 64, P["DDN"] + P["NDN1"], tiles=range(P["NDN1"], 8), dwait=P["DDN"])
    e.label("L_wd_down2")
    e(f"""s_mul_i32 s90, s4, {2*576*8}
          s_lshl_b32 s54, s6, 9
          s_add_u32 s90, s90, s54
          s_add_u32 s90, s90, {H5}
          s_add_u32 s91, s90, {576*8}
          s_lshl_b32 s52, s5, 3
          s_add_u32 s52, s52, s4
          s_lshl_b32 s52, s52, 8
          s_add_u32 s52, s52, {H6}
          v_mov_b32 v25, v30
          s_mov_b32 s92, {hex(f2u(0.044715))}""")
    stamp(8)
    if P.get("x_nochain"):
        e("s_waitcnt vmcnt(0)"); stamp(9); e("s_branch L_exit")
    gather([f"buffer_load_dwordx2 v[{8+2*k}:{9+2*k}], v25, s[44:47], s{90+k} offen" for k in range(2)], [9, 11], 25, True)
    stamp(9)
    KG = -2 * 0.7978845608028654 * 1.4426950408889634
    e(f"""v_mul_f32 v12, v8, v8
          v_fma_f32 v12, v12, s92, 1.0
          v_mul_f32 v12, v12, v8
          v_mul_f32 v12, {hex(f2u(KG))}, v12
          v_exp_f32 v12, v12
          v_add_f32 v12, 1.0, v12
          v_rcp_f32 v12, v12
          v_mul_f32 v12, v12, v8""")
    bf16r(12, 12)
    e("v_mul_f32 v12, v12, v10\nv_cvt_pk_bf16_f32 v23, v12, v12")
    blk_mfma(23, 64, True)
    blk_reduce(PARTP, C_PP, 9, "L_exit")
    e("v_lshlrev_b32 v27, 4, v0")
    publish_cols_f16p(52)
    stamp(10)

    e.label("L_exit")
    if diag:
        stamp(15)
        e("s_memtime s[100:101]\ns_waitcnt lgkmcnt(0)\ns_sub_u32 s54, s100, s98\nv_writelane_b32 v31, s54, 17")
        e(f"""s_getreg_b32 s54, hwreg(HW_REG_HW_ID)
              v_writelane_b32 v31, s54, 16
              s_mov_b32 exec_hi, 0
              v_lshlrev_b32 v2, 2, v0
              buffer_store_dword v31, v2, s[44:47], s96 offen""")
    e.label("L_end")
    e("s_endpgm")
    e.raw("L_code_end:")
    e.raw(f".fill ({CODE_KB}*1024 - (L_code_end-{KNAME}))/4, 4, 0xBF800000")
    e.raw("s_endpgm")
    e.raw(f""".section .rodata,"a"
.p2align 6
.amdhsa_kernel {KNAME}
  .amdhsa_next_free_vgpr 128
  .amdhsa_next_free_sgpr 102
  .amdhsa_accum_offset 128
  .amdhsa_group_segment_fixed_size 0
  .amdhsa_kernarg_size 112
  .amdhsa_user_sgpr_count 2
  .amdhsa_user_sgpr_kernarg_segment_ptr 1
  .amdhsa_system_sgpr_workgroup_id_x 1
.end_amdhsa_kernel""")
    txt = e.text()
    if diag:
        txt = txt.replace("    s_memrealtime s[80:81]\n    s_cmp_ge_u32 s3, 8",
                          f"    s_lshl_b32 s96, s2, 4\n    s_add_u32 s96, s96, s3\n    s_lshl_b32 s96, s96, 7\n    s_add_u32 s96, s96, {STAMPS}\n    s_memrealtime s[80:81]\n    s_cmp_ge_u32 s3, 8", 1)
    return txt

if __name__ == "__main__":
    kw = {}
    out = "cdna_kernels/" + NAME + ".s"
    for a in sys.argv[1:]:
        k, v = a.split("=")
        if k == "out": out = v
        else: kw[k] = eval(v)
    open(out, "w").write(gen(**kw))
```

```python
import sys, struct
from emit import Emit

NAME = "adaLN_cond__sliding_block_cached__glu_gated_geglu__decode"
KNAME = NAME + "_kernel"

def f2u(x): return struct.unpack("<I", struct.pack("<f", x))[0]

H1, HMOD, H4, H6 = 0x1000, 0x8000, 0xD000, 0x12000
H2, HML, H5, H3 = 0x20000, 0x30000, 0x38000, 0x50000
SLOW = 0x80000
HINT = 0x18000
STAMPS = 0x20000000
QS, PS, PVP, PARTE, PARTP, STAT, CNT, KIMG = 0, 0x800, 0x1000, 0x2000, 0x3400, 0x4800, 0x4900, 0x5000
LDS_BYTES = 0x15000
C_KI, C_P, C_VI, C_PV, C_E, C_PP, C_PUB, C_M = CNT, CNT + 16, CNT + 32, CNT + 36, CNT + 40, CNT + 44, CNT + 48, CNT + 52
C_Q = CNT + 56
C_W = CNT + 60
C_G = CNT + 192
C_H = CNT + 196
MX = CNT + 64
ML = CNT + 128

DEF = dict(diag=False, DK=3, DV=4, DE=8, DQ=2, DWO=1, DP=2, DMOD=1, NM1=5, NK1=0, DK1=1, DK2=5, KGB=100, NP2=0, NP1=0, NV1=0, prf='nt', hint=1, hsleep=2, hneed=5, hdelay=0, DP9=4, x_ifl='sc1', x_xfl='sc1', NDN1=0, DDN=8, RQ=3, PSLEEP=7, p_gate="VI", NFAST=128, SPINMAX=1 << 16, fast=True,
           mod_gate=None, prewrite=True, prewrite_x=False, dn_gate=True, prepoll=False, sleep=1)

def gen(**kw):
    P = dict(DEF); P.update(kw)
    e = Emit()
    diag = P["diag"]
    LOG2E = f2u(1.4426950408889634)

    def stamp(k):
        if diag:
            e(f"s_memrealtime s[80:81]\ns_waitcnt lgkmcnt(0)\nv_writelane_b32 v31, s80, {k}")
    def srd(d, lo, nbytes, off=None):
        if off is None:
            e(f"s_mov_b32 s{d}, s{lo}\ns_and_b32 s{d+1}, s{lo+1}, 0xffff")
        else:
            e(f"s_add_u32 s{d}, s{lo}, {off}\ns_addc_u32 s{d+1}, s{lo+1}, 0\ns_and_b32 s{d+1}, s{d+1}, 0xffff")
        e(f"s_mov_b32 s{d+2}, {nbytes}\ns_mov_b32 s{d+3}, 0x20000")
    def bf16r(d, s):
        e(f"v_cvt_pk_bf16_f32 v{d}, v{s}, v{s}\nv_and_b32 v{d}, 0xffff0000, v{d}")
    def red(op, chains, full=True):
        steps = ["row_ror:8 row_mask:0xf", "row_ror:4 row_mask:0xf", "row_ror:2 row_mask:0xf", "row_ror:1 row_mask:0xf"]
        if full: steps += ["row_bcast:15 row_mask:0xa", "row_bcast:31 row_mask:0xc"]
        for st in steps:
            for c in chains:
                e(f"{op}_dpp v{c}, v{c}, v{c} {st} bank_mask:0xf")
    def lds_wait(vaddr, off, val, tmp=2, sleep=1, bound=None):
        L = e.newlabel("lw"); D = e.newlabel("lwd")
        e(f"s_mov_b32 s53, {bound or P['SPINMAX']*8}")
        e.label(L)
        e(f"""ds_read_b32 v{tmp}, v{vaddr} offset:{off}
              s_waitcnt lgkmcnt(0)
              v_readfirstlane_b32 s54, v{tmp}
              s_cmp_ge_u32 s54, {val}
              s_cbranch_scc1 {D}
              s_sleep {sleep}
              s_sub_u32 s53, s53, 1
              s_cmp_lg_u32 s53, 0
              s_cbranch_scc1 {L}""")
        e.label(D)
    def gather(loads, tags, vaddr, intra, fstamp=None):
        assert len(loads) == len(tags) or len(loads) == 1
        L = e.newlabel("g"); D = e.newlabel("gd"); C = e.newlabel("gc")
        e("s_mov_b32 s53, 0")
        vas = vaddr if isinstance(vaddr, list) else [vaddr]
        if intra and not P["fast"]:
            for va in vas: e(f"v_add_u32 v{va}, {SLOW}, v{va}")
        for ld in loads: e(ld + (" " + P["x_ifl"] if intra else " " + P["x_xfl"]))
        e(f"s_branch {C}")
        e.label(L)
        mk = lambda i: f"s[{70+2*i}:{71+2*i}]" if i < 5 else "s[58:59]"
        for i, ld in enumerate(loads):
            if len(loads) == 1:
                e("s_mov_b64 exec, vcc"); e(ld + (" " + P["x_ifl"] if intra else " " + P["x_xfl"]))
            else:
                S = e.newlabel("gs")
                e(f"s_mov_b64 exec, {mk(i)}\ns_cbranch_execz {S}")
                e(ld + (" " + P["x_ifl"] if intra else " " + P["x_xfl"]))
                e.label(S)
        e("s_mov_b64 exec, -1")
        e.label(C)
        e("s_waitcnt vmcnt(0)")
        if diag and fstamp:
            F = e.newlabel("gf")
            e(f"s_cmp_lg_u32 s53, 0\ns_cbranch_scc1 {F}"); stamp(fstamp); e.label(F)
        for i, t in enumerate(tags):
            e(f"v_cmp_ne_u32_e64 {mk(i)}, s7, v{t}")
        e(f"s_or_b64 vcc, {mk(0)}, {mk(min(1, len(tags)-1))}")
        for i in range(2, len(tags)): e(f"s_or_b64 vcc, vcc, {mk(i)}")
        e(f"s_cbranch_scc0 {D}")
        e("s_add_u32 s53, s53, 1")
        if intra and P["fast"]:
            e(f"s_cmp_eq_u32 s53, {P['NFAST']}\ns_cselect_b32 s54, {SLOW}, 0")
            for va in vas: e(f"v_add_u32 v{va}, s54, v{va}")
        if P["sleep"]: e(f"s_sleep {P['sleep']}")
        e(f"s_cmp_lt_u32 s53, {P['SPINMAX']}\ns_cbranch_scc1 {L}")
        e.label(D)
        if diag and fstamp: e(f"v_writelane_b32 v31, s53, {fstamp+1}")
    def pgather(loads, tags, sets, vaddr, intra, cont, pre=None):
        R = len(sets); n = len(loads(0))
        if R == 1:
            if pre: pre(0)
            gather(loads(sets[0]), tags(sets[0]), vaddr, intra); cont(sets[0]); return
        L = e.newlabel("pg"); D = e.newlabel("pgd"); OK = [e.newlabel("pgo") for _ in sets]
        e("s_mov_b32 s53, 0")
        if intra and not P["fast"]: e(f"v_add_u32 v{vaddr}, {SLOW}, v{vaddr}")
        for r in sets[:-1]:
            for ld in loads(r): e(ld + (" " + P["x_ifl"] if intra else " " + P["x_xfl"]))
            if pre and r == sets[0]: pre(n)
            else: e(f"s_sleep {P['PSLEEP']}")
        e.label(L)
        for i, r in enumerate(sets):
            for ld in loads(sets[i - 1]): e(ld + (" " + P["x_ifl"] if intra else " " + P["x_xfl"]))
            e(f"s_waitcnt vmcnt({(R-1)*n})")
            tg = tags(r)
            e(f"v_cmp_ne_u32 vcc, s7, v{tg[0]}")
            for j, t in enumerate(tg[1:]):
                pr = 56 + 2 * (j & 1)
                e(f"v_cmp_ne_u32_e64 s[{pr}:{pr+1}], s7, v{t}\ns_or_b64 vcc, vcc, s[{pr}:{pr+1}]")
            if len(tg) == 1: e("s_or_b64 vcc, vcc, vcc")
            e(f"s_cbranch_scc0 {OK[i]}")
        e("s_add_u32 s53, s53, 1")
        if intra and P["fast"]:
            e(f"s_cmp_eq_u32 s53, {P['NFAST']}\ns_cselect_b32 s54, {SLOW}, 0\nv_add_u32 v{vaddr}, s54, v{vaddr}")
        e(f"s_cmp_lt_u32 s53, {P['SPINMAX']}\ns_cbranch_scc1 {L}")
        for i, r in enumerate(sets):
            e.label(OK[i]); cont(r)
            if i < R - 1: e(f"s_branch {D}")
        e.label(D)
    def prepoll(soff, offs):
        if not P["prepoll"]: return
        L = e.newlabel("pp"); D = e.newlabel("ppd")
        e(f"s_add_u32 s70, s40, s{soff}\ns_addc_u32 s71, s41, 0\ns_mov_b32 s53, 0")
        e.label(L)
        for i, o in enumerate(offs): e(f"s_load_dword s{72+i}, s[70:71], {o} glc")
        e("s_waitcnt lgkmcnt(0)")
        e("s_xor_b32 s54, s72, s7")
        for i in range(1, len(offs)): e(f"s_xor_b32 s55, s{72+i}, s7\ns_or_b32 s54, s54, s55")
        e(f"s_cmp_eq_u32 s54, 0\ns_cbranch_scc1 {D}")
        e(f"s_add_u32 s53, s53, 1\ns_cmp_lt_u32 s53, {P['NFAST']}\ns_cbranch_scc1 {L}")
        e.label(D)
    def prewrite8(soff, who, flags=""):
        L = e.newlabel("pw")
        e(f"""s_cmp_lg_u32 s6, {who}
              s_cbranch_scc1 {L}
              buffer_load_dwordx2 v[20:21], v30, s[44:47], s{soff} offen {P["prf"]}""")
        if P["prf"] == "nt":
            e(f"""s_xor_b32 s54, s7, 1
                  v_mov_b32 v97, s54
                  buffer_store_dwordx2 v[96:97], v30, s[44:47], s{soff} offen""")
        e.label(L)
    def publish(st, intra, soff):
        if intra:
            if P["fast"]: e(st.format(so=f"s{soff}"))
            if P.get("x_noslow"): return
            e(f"s_add_u32 s54, s{soff}, {SLOW}")
            e(st.format(so="s54") + " sc1")
        else:
            e(st.format(so=f"s{soff}") + " sc1")
    def blk_load(sr, vo, so, RS, r0, D, barrier_at=False, split=8, tiles=range(8), dwait=None):
        for t in tiles:
            e(f"buffer_load_dwordx4 v[{r0+4*t}:{r0+4*t+3}], v{vo}, s[{sr}:{sr+3}], s{so} offen nt")
            if t < 7: e(f"s_add_u32 s{so}, s{so}, {8*RS}")
            if barrier_at and t == D - 1:
                aw_consts()
                start_barrier()
                if diag: e("v_writelane_b32 v31, s80, 0")
            if t == split - 1 and t < 7: lds_wait(1, C_VI, 4)
            if t >= D - 1 and t < 7 and t < split - 1: e(f"s_waitcnt vmcnt({(dwait or D)-1})")
    def blk_voff(vo, RS):
        e(f"v_lshrrev_b32 v{vo}, 3, v0\nv_mul_u32_u24 v{vo}, {RS}, v{vo}\nv_and_b32 v2, 7, v0\nv_lshl_add_u32 v{vo}, v2, 4, v{vo}")
    def masks():
        e("""v_and_b32 v2, 1, v0
             v_cmp_eq_u32 vcc, 1, v2
             v_mov_b32 v3, 0xffff
             v_mov_b32 v8, 0xffff0000
             v_cndmask_b32 v3, v3, v8, vcc
             v_bfe_u32 v2, v0, 1, 2""")
        for j in range(4):
            e(f"v_cmp_eq_u32 vcc, {j}, v2\nv_cndmask_b32 v{4+j}, 0, v3, vcc")
    def aw_consts():
        masks()
        e("""v_lshrrev_b32 v3, 3, v0
             v_lshlrev_b32 v3, 2, v3
             v_lshlrev_b32 v29, 2, v0
             v_lshlrev_b32 v30, 3, v0
             v_mov_b32 v1, 0
             v_and_b32 v2, 7, v0
             v_lshlrev_b32 v28, 5, v2
             v_and_b32 v2, 16, v0
             v_add_u32 v28, v28, v2
             v_and_b32 v2, 32, v0
             v_lshl_add_u32 v28, v2, 3, v28
             s_lshl_b32 s54, s6, 9
             v_add_u32 v28, s54, v28
             s_mov_b32 s60, 0x00ff00ff
             s_mov_b32 s61, 0xff00ff00""")
    def blk_mfma(hd, r0, first, vb=3, step=32):
        for t in range(8): e(f"ds_bpermute_b32 v{8+t}, v{vb}, v{hd} offset:{step*t}")
        for t in range(8):
            e(f"s_waitcnt lgkmcnt({7-t})")
            a = 96 + 4 * t
            for j in range(4): e(f"v_and_b32 v{a+j}, v{8+t}, v{4+j}")
            if t > 0:
                c = "0" if (first and t == 1) else "v[24:27]"
                e(f"v_mfma_f32_16x16x32_bf16 v[24:27], v[{a-4}:{a-1}], v[{r0+4*t-4}:{r0+4*t-1}], {c}")
        e(f"v_mfma_f32_16x16x32_bf16 v[24:27], v[124:127], v[{r0+28}:{r0+31}], v[24:27]")
    def blk_prep(hd, vb=3, step=32):
        for t in range(8): e(f"ds_bpermute_b32 v{8+t}, v{vb}, v{hd} offset:{step*t}")
        for t in range(8):
            e(f"s_waitcnt lgkmcnt({7-t})")
            for j in range(4): e(f"v_and_b32 v{96+4*t+j}, v{8+t}, v{4+j}")
    def blk_run(r0, nout=0):
        for t in range(8):
            e(f"s_waitcnt vmcnt({7-t+nout})")
            c = "0" if t == 0 else "v[24:27]"
            e(f"v_mfma_f32_16x16x32_bf16 v[24:27], v[{96+4*t}:{99+4*t}], v[{r0+4*t}:{r0+4*t+3}], {c}")
    def blk_reduce(part, cnt, n, notlast, first=None):
        e(f"""v_mov_b32 v2, 1
              s_mov_b64 exec, s[60:61]
              ds_write_b128 v28, v[24:27] offset:{part}
              s_mov_b64 exec, 1
              ds_add_rtn_u32 v2, v1, v2 offset:{cnt}
              s_mov_b64 exec, -1
              s_waitcnt lgkmcnt(0)
              v_readfirstlane_b32 s54, v2""")
        nmax = n if isinstance(n, int) else 5
        if isinstance(n, int): e(f"s_cmp_lg_u32 s54, {n-1}")
        else: e(f"s_add_u32 s54, s54, 1\ns_cmp_lg_u32 s54, {n}")
        e(f"s_cbranch_scc1 {notlast}")
        u = part // 256
        for w in range(nmax):
            e(f"ds_read2st64_b32 v[{8+2*w}:{9+2*w}], v29 offset0:{u+2*w} offset1:{u+2*w+1}")
        if first: first()
        if not isinstance(n, int):
            e(f"s_cmp_eq_u32 {n}, 5\ns_cselect_b32 s54, -1, 0")
        for w in range(nmax):
            e(f"s_waitcnt lgkmcnt({nmax-1-w})")
            e(f"v_add_f32 v{8+2*w}, v{8+2*w}, v{9+2*w}")
            if not isinstance(n, int) and w == 4: e("v_and_b32 v16, s54, v16")
            if w > 0: e(f"v_add_f32 v8, v8, v{8+2*w}")
    def pack4(a, b, c, d):
        e(f"v_perm_b32 v{a}, v{a}, v{d}, s62\nv_perm_b32 v{b}, v{b}, v{d}, s63\nv_perm_b32 v{c}, v{c}, v{d}, s64\nv_mov_b32 v{a+3}, s7")
    def pack_consts():
        e("s_mov_b32 s62, 0x07060501\ns_mov_b32 s63, 0x07060502\ns_mov_b32 s64, 0x07060503\ns_mov_b32 s65, 0x0c04000c")
    def publish_cols_f16p(soff):
        e("""v_mov_b32 v10, v8
             v_permlane32_swap_b32 v8, v10
             v_mov_b32 v9, v8
             v_mov_b32 v11, v10
             v_permlane16_swap_b32 v8, v9
             v_permlane16_swap_b32 v10, v11""")
        pack4(8, 9, 10, 11)
        e("s_mov_b64 exec, 0xffff")
        publish("buffer_store_dwordx4 v[8:11], v27, s[44:47], {so} offen", False, soff)
        e("s_mov_b64 exec, -1")
    def unpack_reduce(n, base=8, scale=None):
        for k in range(n):
            b = base + 4 * k
            e(f"v_perm_b32 v{b+3}, v{b+1}, v{b}, s65\nv_lshl_or_b32 v{b+3}, v{b+2}, 24, v{b+3}")
        if scale:
            for i in range(4): e(f"v_mul_f32 v{base+i}, v{base+i}, v{scale}")
        for k in range(1, n):
            for i in range(4):
                if scale: e(f"v_fmac_f32 v{base+i}, v{base+4*k+i}, v{scale+k}")
                else: e(f"v_add_f32 v{base+i}, v{base+i}, v{base+4*k+i}")
        b = base
        e(f"""v_permlane32_swap_b32 v{b}, v{b+2}
              v_permlane32_swap_b32 v{b+1}, v{b+3}
              v_add_f32 v{b}, v{b}, v{b+2}
              v_add_f32 v{b+1}, v{b+1}, v{b+3}
              v_permlane16_swap_b32 v{b}, v{b+1}
              v_add_f32 v{b}, v{b}, v{b+1}""")
    def ln_finish(x, mean, var, out, t):
        e(f"""v_cvt_pk_bf16_f32 v{t}, v{mean}, v{var}
              v_lshlrev_b32 v{mean}, 16, v{t}
              v_and_b32 v{var}, 0xffff0000, v{t}
              v_add_f32 v{var}, {hex(f2u(1e-5))}, v{var}
              v_sub_f32 v{out}, v{x}, v{mean}
              v_cvt_pk_bf16_f32 v{t}, v{out}, v{var}
              v_and_b32 v{var}, 0xffff0000, v{t}
              v_sqrt_f32 v{var}, v{var}
              v_lshlrev_b32 v{out}, 16, v{t}""")
        bf16r(var, var)
        e(f"v_rcp_f32 v{var}, v{var}\nv_mul_f32 v{out}, v{out}, v{var}")
        bf16r(out, out)
    def silu_dup(x, t):
        e(f"""v_max_f32 v{x}, 0xc3000000, v{x}
              v_mul_f32 v{t}, {hex(f2u(-1.4426950408889634))}, v{x}
              v_exp_f32 v{t}, v{t}
              v_add_f32 v{t}, 1.0, v{t}
              v_min_f32 v{t}, 0x7e800000, v{t}
              v_rcp_f32 v8, v{t}
              v_mul_f32 v9, v{x}, v8
              v_fma_f32 v{x}, -v9, v{t}, v{x}
              v_fma_f32 v{x}, v{x}, v8, v9
              v_cvt_pk_bf16_f32 v{x}, v{x}, v{x}""")
    def x1_from(attn, ga, x):
        bf16r(attn, attn)
        e(f"v_mul_f32 v{attn}, v{ga}, v{attn}")
        bf16r(attn, attn)
        e(f"v_add_f32 v{attn}, v{x}, v{attn}")
        bf16r(attn, attn)
    def kv_soff():
        e("""s_and_b32 s52, s5, 3
             s_lshl_b32 s52, s52, 2
             s_add_u32 s52, s52, s3
             s_lshl_b32 s52, s52, 12""")
    def start_barrier():
        e("""s_waitcnt lgkmcnt(0)
             s_mul_i32 s7, s42, 1664525
             s_add_u32 s7, s7, 1013904223
             s_barrier""")

    e.raw(open("cdna_kernels/" + NAME + ".s.ref").read().split("; Override launch")[0].rstrip("\n"))
    e.raw(f"; @launch grid=(256,1,1) block=(1024,1,1) lds={LDS_BYTES}")
    e.raw('.amdgcn_target "amdgcn-amd-amdhsa--gfx950"\n.text')
    e.raw(f".globl {KNAME}\n.p2align 8\n.type {KNAME},@function\n{KNAME}:")
    if P.get("x_amp") == "karg": e("s_memrealtime s[98:99]")
    e("""s_getpc_b64 s[70:71]
         v_lshlrev_b32 v2, 4, v0
         s_cmp_ge_u32 s2, 256
         s_cbranch_scc1 L_end
         global_load_dwordx4 v[124:127], v2, s[70:71] offset:-4
         s_load_dwordx16 s[16:31], s[0:1], 0
         s_load_dwordx8 s[32:39], s[0:1], 64
         s_load_dwordx2 s[40:41], s[0:1], 104
         v_lshrrev_b32 v1, 6, v0
         v_and_b32 v0, 63, v0
         s_and_b32 s4, s2, 7
         s_lshr_b32 s5, s2, 3
         v_readfirstlane_b32 s3, v1""")
    if diag: e("v_mov_b32 v31, 0")
    e("""s_lshl_b32 s52, s4, 25
         s_lshr_b32 s54, s5, 4
         s_lshl_b32 s54, s54, 24
         s_add_u32 s52, s52, s54
         s_and_b32 s54, s5, 15
         s_lshl_b32 s54, s54, 16
         s_add_u32 s52, s52, s54
         s_add_u32 s52, s52, 0xf00000
         s_waitcnt lgkmcnt(0)
         s_load_dword s42, s[40:41], 0""")
    srd(44, 40, 0x40000000)
    if P.get("x_amp"): e("s_memrealtime s[98:99]" if P["x_amp"] != "karg" else "s_memrealtime s[100:101]")
    if diag:
        e("s_memtime s[98:99]")
        e("s_memrealtime s[80:81]")
    e("""s_cmp_ge_u32 s3, 8
         s_cbranch_scc1 L_aw
         s_cmp_ge_u32 s3, 4
         s_cbranch_scc1 L_vw""")

    srd(8, 18, 65536, "s52")
    e("""v_lshrrev_b32 v1, 4, v0
         v_and_b32 v2, 15, v0
         v_xor_b32 v3, v1, v2
         v_lshlrev_b32 v3, 4, v3
         v_lshl_add_u32 v4, v1, 8, v3
         v_xor_b32 v5, 64, v4""")
    if P.get("x_noswz"): e("v_lshlrev_b32 v4, 4, v0\nv_mov_b32 v5, v4")
    e("""
         s_lshl_b32 s54, s3, 14
         v_xor_b32 v6, 0x80, v4
         v_xor_b32 v7, 0xc0, v4""")
    e(f"s_add_u32 m0, s54, {KIMG}")
    kv_soff()
    def k_loop(DK, NK1=0, DK1=1):
        for u in range(16):
            D = DK1 if u < NK1 - 1 else DK
            e(f"buffer_load_dwordx4 v{4+(u&3)}, s[8:11], s52 offen offset:{(u&3)*1024} nt lds")
            if (u & 3) == 3 and u < 15: e("s_addk_i32 s52, 0x4000\ns_addk_i32 m0, 0x1000\ns_and_b32 s52, s52, 0xffff")
            if u == (min(DK1, NK1) if NK1 else DK) - 1:
                start_barrier()
                if diag: e("v_writelane_b32 v31, s80, 0")
            if u == NK1 - 1:
                e("v_mov_b32 v30, 0")
                lds_wait(30, C_G, 1, tmp=29, bound=P["KGB"])
            if u >= D - 1 and u < 15: e(f"s_waitcnt vmcnt({D-1})")
    if P["NK1"]:
        e("s_cmp_ge_u32 s5, 9\ns_cbranch_scc1 L_k_gated")
    k_loop(P["DK"])
    if P["NK1"]:
        e("s_branch L_k_done")
        e.label("L_k_gated")
        k_loop(P["DK2"], P["NK1"], P["DK1"])
        e.label("L_k_done")
    e(f"""s_lshl_b32 s54, s3, 2
          v_mov_b32 v29, s54
          v_mov_b32 v30, 1
          ds_write_b32 v29, v30 offset:{C_KI}""")
    stamp(1)
    e(f"""s_lshl_b32 s54, s3, 14
          s_add_u32 s54, s54, {KIMG}
          v_lshl_add_u32 v4, v2, 8, v3
          v_add_u32 v4, s54, v4
          v_xor_b32 v5, 64, v4
          v_xor_b32 v6, 0x80, v4
          v_xor_b32 v7, 0xc0, v4
          s_lshl_b32 s54, s3, 7
          v_and_b32 v28, 31, v0
          v_lshl_add_u32 v24, v28, 2, s54
          v_and_b32 v25, 1, v0
          v_lshlrev_b32 v25, 8, v25
          v_lshl_add_u32 v25, v1, 4, v25
          s_lshl_b32 s54, s3, 9
          v_and_b32 v26, 3, v0
          v_lshlrev_b32 v26, 6, v26
          v_and_b32 v27, 60, v0
          v_add3_u32 v26, v26, v27, s54
          v_and_b32 v27, 32, v0
          v_lshlrev_b32 v27, 6, v27
          v_lshl_add_u32 v27, v28, 4, v27
          s_lshl_b32 s66, s4, 1
          s_lshr_b32 s55, s5, 4
          s_add_u32 s66, s66, s55
          s_lshl_b32 s67, s66, 12
          s_add_u32 s67, s67, s54
          s_add_u32 s67, s67, {H2}
          s_mov_b32 s82, 0xffff0000
          s_mov_b32 s83, 0
          s_mov_b32 s84, 0
          s_mov_b32 s85, 0xffff
          s_mov_b32 s86, 0
          s_mov_b32 s87, 0xffff0000
          s_mov_b32 s88, {hex(LOG2E)}""")
    def k_landed(n):
        e(f"s_waitcnt vmcnt({n})")
        stamp(2)
        if P.get("x_nochain"): e("s_branch L_exit")
        for t in range(4):
            for i in range(4):
                r = 32 + 16 * t + 4 * i
                e(f"ds_read_b128 v[{r}:{r+3}], v{4+i} offset:{t*4096}")
    def q_cont(r):
        e(f"v_mov_b32 v4, v{r}\nv_mov_b32 v5, v{r+2}\nv_mov_b32 v6, v{r}\nv_mov_b32 v7, v{r+2}")
    pgather(lambda r: [f"buffer_load_dwordx4 v[{r}:{r+3}], v27, s[44:47], s67 offen"], lambda r: [r + 1, r + 3],
            [8, 12, 16, 20][:P["RQ"]], 27, True, q_cont, k_landed)
    stamp(3)
    e(f"""v_permlane32_swap_b32 v4, v6
          v_permlane32_swap_b32 v5, v7
          v_mov_b32 v1, 0
          v_add_f32 v4, v4, v6
          v_add_f32 v5, v5, v7
          v_cvt_pk_bf16_f32 v4, v4, v5
          ds_write_b32 v24, v4 offset:{QS}
          s_mov_b64 exec, 1
          ds_add_u32 v1, v30 offset:{C_Q}
          s_mov_b64 exec, -1""")
    lds_wait(1, C_Q, 4, sleep=0)
    for i in range(4): e(f"ds_read_b128 v[{96+4*i}:{99+4*i}], v25 offset:{QS+64*i}")
    for i in range(4):
        e(f"s_waitcnt lgkmcnt({3-i})")
        for t in range(4):
            r = 32 + 16 * t + 4 * i; d = 112 + 4 * t
            c = "0" if i == 0 else f"v[{d}:{d+3}]"
            e(f"v_mfma_f32_16x16x32_bf16 v[{d}:{d+3}], v[{96+4*i}:{99+4*i}], v[{r}:{r+3}], {c}")
    for h in range(2):
        e(f"v_cndmask_b32_e64 v{32+h}, v{112+h}, v{116+h}, s[82:83]")
    for h in range(2):
        e(f"v_cndmask_b32_e64 v{32+h}, v{32+h}, v{120+h}, s[84:85]")
    for h in range(2):
        e(f"v_cndmask_b32_e64 v{32+h}, v{32+h}, v{124+h}, s[86:87]")
    SC = hex(f2u(128 ** -0.5))
    e(f"""v_cvt_pk_bf16_f32 v34, v32, v33
          v_lshlrev_b32 v32, 16, v34
          v_and_b32 v33, 0xffff0000, v34
          v_mul_f32 v32, {SC}, v32
          v_mul_f32 v33, {SC}, v33
          v_cvt_pk_bf16_f32 v34, v32, v33
          v_lshlrev_b32 v32, 16, v34
          v_and_b32 v33, 0xffff0000, v34
          v_mov_b32 v34, v32
          v_mov_b32 v35, v33""")
    red("v_max_f32", [34, 35])
    e(f"""v_lshlrev_b32 v36, 1, v29
          v_mov_b32 v1, 0
          s_mov_b32 s58, 0
          s_mov_b32 s59, 0x80000000
          s_mov_b64 exec, s[58:59]
          ds_write_b64 v36, v[34:35] offset:{MX}
          ds_add_u32 v1, v30 offset:{C_M}
          s_mov_b64 exec, -1""")
    lds_wait(1, C_M, 4, sleep=0)
    e(f"""ds_read_b128 v[40:43], v1 offset:{MX}
          ds_read_b128 v[44:47], v1 offset:{MX+16}
          s_waitcnt lgkmcnt(0)
          v_max3_f32 v34, v40, v42, v44
          v_max3_f32 v35, v41, v43, v45
          v_max_f32 v34, v34, v46
          v_max_f32 v35, v35, v47
          v_sub_f32 v37, v32, v34
          v_sub_f32 v38, v33, v35
          v_mul_f32 v37, s88, v37
          v_mul_f32 v38, s88, v38
          v_exp_f32 v37, v37
          v_exp_f32 v38, v38
          v_lshrrev_b32 v36, 16, v34
          v_cvt_pk_bf16_f32 v32, v37, v37
          v_cvt_pk_bf16_f32 v33, v38, v38
          ds_write_b32 v26, v32 offset:{PS}
          ds_write_b32 v26, v33 offset:{PS+256}
          v_or_b32 v36, v36, v35
          v_lshlrev_b32 v39, 2, v29""")
    red("v_add_f32", [37, 38])
    e(f"""s_mov_b64 exec, s[58:59]
          ds_write_b96 v39, v[36:38] offset:{ML}
          ds_write_b32 v29, v30 offset:{C_P}
          s_mov_b64 exec, -1""")
    stamp(6)
    e("""s_cmp_lg_u32 s3, 0
         s_cbranch_scc1 L_exit
         s_cmp_ge_u32 s5, 27
         s_cbranch_scc1 L_exit
         s_mov_b32 s6, 8
         s_waitcnt vmcnt(0)""")
    aw_consts()
    e("""s_cmp_ge_u32 s5, 9
         s_cbranch_scc1 L_gu_post""")
    e("s_branch L_wd_9")

    e.label("L_vw")
    CODE_KB = P.get("code_kb", 16)
    e("""s_sub_u32 s3, s3, 4
         v_lshlrev_b32 v27, 4, v0""")
    srd(8, 20, 65536, "s52")
    kv_soff()
    masks()
    pack_consts()
    e(f"""s_lshl_b32 s54, s3, 2
          v_mov_b32 v29, s54
          v_mov_b32 v1, 0
          v_bfe_u32 v2, v0, 3, 1
          v_lshlrev_b32 v28, 8, v2
          v_and_b32 v3, 48, v0
          v_lshl_add_u32 v28, v3, 2, v28
          s_lshl_b32 s54, s3, 9
          v_add_u32 v28, s54, v28
          v_and_b32 v3, 32, v0
          v_lshl_add_u32 v30, v2, 4, v3
          v_and_b32 v3, 7, v0
          v_lshl_add_u32 v30, v3, 1, v30
          v_bfe_u32 v3, v0, 4, 1
          v_add_u32 v30, v30, v3
          v_lshlrev_b32 v30, 4, v30
          s_lshl_b32 s54, s3, 10
          v_add_u32 v30, s54, v30
          s_lshl_b32 s66, s4, 5
          s_add_u32 s66, s66, s5
          s_lshl_b32 s68, s66, 7
          s_add_u32 s68, s68, {HML}
          s_lshl_b32 s66, s66, 10
          s_add_u32 s66, s66, {H3}""")
    start_barrier()
    if diag: e("v_writelane_b32 v31, s80, 0")
    if P["prewrite"] and P["fast"]:
        e("""s_cmp_lg_u32 s3, 0
             s_cbranch_scc1 L_vw_nopw
             buffer_load_dwordx4 v[8:11], v27, s[44:47], s66 offen PRF
             s_mov_b64 exec, 0xff
             buffer_load_dwordx4 v[8:11], v27, s[44:47], s68 offen PRF
             s_mov_b64 exec, -1""".replace("PRF", P["prf"]))
        if P["prf"] == "nt":
            e("""s_xor_b32 s54, s7, 1
                 v_mov_b32 v15, s54
                 buffer_store_dwordx4 v[12:15], v27, s[44:47], s66 offen
                 s_mov_b64 exec, 0xff
                 buffer_store_dwordx4 v[12:15], v27, s[44:47], s68 offen
                 s_mov_b64 exec, -1""")
        e.label("L_vw_nopw")
    DV = P["DV"]
    for u in range(16):
        if u == P["NV1"]:
            lds_wait(29, C_KI, 1)
            stamp(1)
        e(f"buffer_load_dwordx4 v[{32+4*u}:{35+4*u}], v27, s[8:11], s52 offen offset:{(u&3)*1024} nt")
        if (u & 3) == 3 and u < 15: e("s_addk_i32 s52, 0x4000\ns_and_b32 s52, s52, 0xffff")
        if u >= DV - 1 and u < 15: e(f"s_waitcnt vmcnt({DV-1})")
    e(f"""v_mov_b32 v2, 1
          s_mov_b64 exec, 1
          ds_add_u32 v1, v2 offset:{C_VI}
          s_mov_b64 exec, -1""")
    stamp(2)
    if P.get("x_nochain"):
        e("s_waitcnt vmcnt(0)"); stamp(4); e("s_branch L_exit")
    lds_wait(29, C_P, 1)
    stamp(3)
    for i in range(4): e(f"ds_read_b128 v[{8+4*i}:{11+4*i}], v28 offset:{PS+16*i}")
    for u in range(16):
        if u % 4 == 0: e(f"s_waitcnt lgkmcnt({3-u//4})")
        a = 96 + 4 * (u % 8)
        for j in range(4): e(f"v_and_b32 v{a+j}, v{8+u}, v{4+j}")
        if u > 0:
            pa = 96 + 4 * ((u - 1) % 8)
            if 15 - (u - 1) < DV: e(f"s_waitcnt vmcnt({15-(u-1)})")
            c = "0" if u == 1 else "v[24:27]"
            if u == 1: e("v_mov_b32 v3, v27")
            e(f"v_mfma_f32_16x16x32_bf16 v[24:27], v[{pa}:{pa+3}], v[{32+4*(u-1)}:{35+4*(u-1)}], {c}")
    e("s_waitcnt vmcnt(0)")
    stamp(4)
    e(f"""v_mfma_f32_16x16x32_bf16 v[24:27], v[124:127], v[92:95], v[24:27]
          v_mov_b32 v2, 1
          ds_write_b128 v30, v[24:27] offset:{PVP}
          s_mov_b64 exec, 1
          ds_add_rtn_u32 v2, v1, v2 offset:{C_PV}
          s_mov_b64 exec, -1
          s_waitcnt lgkmcnt(0)
          v_readfirstlane_b32 s54, v2
          s_cmp_lg_u32 s54, 3
          s_cbranch_scc1 L_exit""")
    for i in range(4): e(f"ds_read_b128 v[{8+4*i}:{11+4*i}], v3 offset:{PVP+1024*i}")
    for i in range(4): e(f"ds_read_b128 v[{32+4*i}:{35+4*i}], v1 offset:{ML+16*i}")
    for k in range(1, 4):
        e(f"s_waitcnt lgkmcnt({7-k})")
        for i in range(4): e(f"v_add_f32 v{8+i}, v{8+i}, v{8+4*k+i}")
    pack4(8, 9, 10, 11)
    if P["fast"]: e("buffer_store_dwordx4 v[8:11], v3, s[44:47], s66 offen")
    e("""s_waitcnt lgkmcnt(0)
         v_add_f32 v33, v33, v37
         v_add_f32 v34, v34, v38
         v_add_f32 v41, v41, v45
         v_add_f32 v42, v42, v46
         v_mov_b32 v35, s7
         v_add_f32 v33, v33, v41
         v_add_f32 v34, v34, v42
         s_mov_b64 exec, 0xff""")
    if P["fast"]: e("buffer_store_dwordx4 v[32:35], v3, s[44:47], s68 offen")
    e(f"s_mov_b64 exec, -1\nv_mov_b32 v2, 1\nds_write_b32 v1, v2 offset:{C_PUB}")
    stamp(5)
    if P["fast"]:
        e("s_cmp_ge_u32 s5, 9\ns_cbranch_scc1 L_vw_slow")
        lds_wait(1, C_W, 1, sleep=2, bound=48)
        e.label("L_vw_slow")
    if not P.get("x_noslow"):
        e(f"""s_add_u32 s68, s68, {SLOW}
              s_add_u32 s66, s66, {SLOW}
              buffer_store_dwordx4 v[8:11], v3, s[44:47], s66 offen sc1
              s_mov_b64 exec, 0xff
              buffer_store_dwordx4 v[32:35], v3, s[44:47], s68 offen sc1
              s_mov_b64 exec, -1""")
    if P["hint"]:
        Lh = e.newlabel("h"); Dh = e.newlabel("hd")
        e(f"""s_cmp_lt_u32 s5, 9
              s_cbranch_scc1 L_exit
              s_cmp_ge_u32 s5, 27
              s_cbranch_scc1 L_exit
              s_mul_i32 s55, s4, {9*128}
              s_add_u32 s55, s55, {HINT}
              s_mov_b32 s53, {P['NFAST']}
              v_lshlrev_b32 v3, 7, v0
              s_mov_b64 exec, 0x1ff""")
        e.label(Lh)
        e(f"""buffer_load_dword v2, v3, s[44:47], s55 offen sc1
              s_waitcnt vmcnt(0)
              v_cmp_eq_u32 vcc, s7, v2
              s_bcnt1_i32_b64 s54, vcc
              s_cmp_ge_u32 s54, {P['hneed']}
              s_cbranch_scc1 {Dh}
              s_sleep {P['hsleep']}
              s_sub_u32 s53, s53, 1
              s_cmp_lg_u32 s53, 0
              s_cbranch_scc1 {Lh}""")
        e.label(Dh)
        e(f"s_mov_b64 exec, -1\nv_mov_b32 v2, 1\nds_write_b32 v1, v2 offset:{C_H}")
    e("s_branch L_exit")

    e.label("L_aw")
    e("s_sub_u32 s6, s3, 8")
    if P.get("x_noaw"):
        e("v_lshlrev_b32 v30, 3, v0\nv_mov_b32 v8, 0\nv_mov_b32 v9, 0")
        e(f"ds_write_b64 v30, v[8:9] offset:{STAT}")
        start_barrier(); e("s_branch L_exit")
    e("""s_cmp_lt_u32 s5, 9
         s_cbranch_scc1 L_wd
         s_cmp_lt_u32 s5, 25
         s_cbranch_scc1 L_q""")
    def zero_lds():
        Lz = e.newlabel("z")
        e(f"""s_cmp_lg_u32 s6, 7
              s_cbranch_scc1 {Lz}
              v_mov_b32 v8, 0
              v_mov_b32 v9, 0
              ds_write_b64 v30, v[8:9] offset:{STAT}""")
        e.label(Lz)
    e(f"""s_mul_i32 s66, s4, 7
          s_add_u32 s66, s66, s5
          s_sub_u32 s66, s66, 25
          s_mul_i32 s67, s66, 0x5556
          s_lshr_b32 s67, s67, 16
          s_mul_i32 s54, s67, 3
          s_sub_u32 s68, s66, s54
          s_mul_i32 s69, s68, 3
          s_add_u32 s69, s69, s6""")
    srd(8, 36, 576 * 6912)
    srd(48, 34, 1152)
    blk_voff(26, 6912)
    e("""s_cmp_lt_u32 s66, 54
         s_cselect_b32 s55, s6, 7
         s_cmp_ge_u32 s55, 3
         s_cbranch_scc1 L_a_skip""")
    e(f"""s_mul_i32 s52, s69, {64*6912}
          s_lshl_b32 s54, s67, 7
          s_add_u32 s52, s52, s54
          s_lshl_b32 s54, s69, 7
          v_lshlrev_b32 v2, 1, v0
          buffer_load_ushort v25, v2, s[48:51], s54 offen""")
    blk_load(8, 26, 52, 6912, 32, P["DE"])
    aw_consts()
    start_barrier()
    if diag: e("v_writelane_b32 v31, s80, 0")
    e(f"""s_mul_i32 s52, s68, {1152*8}
          s_lshl_b32 s54, s67, 9
          s_add_u32 s52, s52, s54
          s_add_u32 s52, s52, {H1}
          s_waitcnt vmcnt(8)
          v_lshlrev_b32 v25, 16, v25""")
    silu_dup(25, 2)
    blk_prep(25)
    blk_run(32)
    stamp(1)
    blk_reduce(PARTE, C_E, 3, "L_a_done")
    e("v_mov_b32 v9, s7")
    publish("buffer_store_dwordx2 v[8:9], v30, s[44:47], {so} offen", False, 52)
    e(f"v_mov_b32 v2, 1\nds_write_b32 v1, v2 offset:{C_G}")
    stamp(2)
    e("s_branch L_a_done")
    e.label("L_a_skip")
    aw_consts()
    zero_lds()
    start_barrier()
    if diag: e("v_writelane_b32 v31, s80, 0")
    e.label("L_a_done")
    e("s_cmp_lt_u32 s5, 27\ns_cbranch_scc1 L_gu_post")
    e("""s_mul_i32 s66, s4, 5
         s_add_u32 s66, s66, s5
         s_sub_u32 s66, s66, 27
         s_cmp_lt_u32 s66, 36
         s_cbranch_scc1 L_mod_go""")
    e(f"s_cmp_lt_u32 s66, 38\ns_cbranch_scc1 L_exit\nv_mov_b32 v2, 1\nds_write_b32 v1, v2 offset:{C_G}\ns_branch L_exit")
    e.label("L_mod_go")
    blk_voff(26, 6912)
    e(f"""s_mul_i32 s52, s6, {64*6912}
          s_lshl_b32 s67, s66, 7
          s_add_u32 s67, s67, {18*128}
          s_add_u32 s52, s52, s67
          s_add_u32 s67, s67, {8*64*6912}
          s_lshl_b32 s54, s6, 7
          v_lshlrev_b32 v2, 1, v0
          buffer_load_ushort v22, v2, s[48:51], s54 offen
          buffer_load_ushort v23, v2, s[48:51], 0 offen offset:1024""")
    e(f"""s_mul_i32 s54, s6, {8*6912}
          s_add_u32 s67, s67, s54
          s_lshl_b32 s54, s6, 5
          v_add_u32 v21, s54, v3
          s_waitcnt vmcnt(0)
          v_lshlrev_b32 v22, 16, v22
          v_lshlrev_b32 v23, 16, v23""")
    silu_dup(22, 2)
    silu_dup(23, 2)
    blk_prep(22)
    e("ds_bpermute_b32 v8, v21, v23\ns_waitcnt lgkmcnt(0)")
    for j in range(4): e(f"v_and_b32 v{36+j}, v8, v{4+j}")
    if P["mod_gate"] == "K": lds_wait(1, C_KI, 1)
    elif P["mod_gate"] == "V": lds_wait(1, C_VI, 4)
    elif P["mod_gate"] == "G": lds_wait(1, C_G, 1)
    blk_load(8, 26, 52, 6912, 64, P["DMOD"], split=P["NM1"])
    if P["NM1"] >= 8: e(f"s_waitcnt vmcnt({P['DMOD']-1})")
    e("buffer_load_dwordx4 v[32:35], v26, s[8:11], s67 offen nt")
    blk_run(64, 1)
    e("s_waitcnt vmcnt(0)\nv_mfma_f32_16x16x32_bf16 v[24:27], v[36:39], v[32:35], v[24:27]")
    stamp(3)
    blk_reduce(PARTP, C_PP, 8, "L_exit")
    bf16r(8, 8)
    e(f"""s_cmp_ge_u32 s66, 27
          s_cbranch_scc1 L_final
          s_lshl_b32 s52, s66, 9
          s_add_u32 s52, s52, {HMOD}
          v_mov_b32 v9, s7""")
    publish("buffer_store_dwordx2 v[8:9], v30, s[44:47], {so} offen", False, 52)
    stamp(4)
    e("s_branch L_exit")
    e.label("L_final")
    stamp(4)
    if P.get("x_nochain"): e("s_branch L_exit")
    pack_consts()
    srd(48, 16, 1152)
    e(f"""s_sub_u32 s66, s66, 27
          v_mov_b32 v24, v8
          s_lshl_b32 s54, s66, 7
          v_lshlrev_b32 v23, 1, v0
          v_add_u32 v23, s54, v23
          buffer_load_ushort v25, v23, s[48:51], 0 offen
          s_lshl_b32 s67, s66, 9
          s_add_u32 s67, s67, {HMOD}
          s_lshl_b32 s68, s66, 11
          s_add_u32 s69, s68, {H6}
          s_add_u32 s68, s68, {H4}
          v_lshlrev_b32 v27, 4, v0""")
    if P.get("x_amp") == "mod": e("s_memrealtime s[100:101]")
    if P.get("x_gudelay"):
        Ld = e.newlabel("dl")
        e("v_readlane_b32 s55, v31, 0")
        e(f"s_add_u32 s55, s55, {P['x_gudelay']}")
        e.label(Ld)
        e(f"s_sleep 2\ns_memrealtime s[80:81]\ns_waitcnt lgkmcnt(0)\ns_sub_u32 s54, s55, s80\ns_cmp_gt_i32 s54, 0\ns_cbranch_scc1 {Ld}")
    lds_wait(1, C_PUB, 1)
    if P.get("x_amp") == "pub": e("s_memrealtime s[100:101]")
    gather(["buffer_load_dwordx2 v[20:21], v30, s[44:47], s67 offen"], [21], 30, False)
    gather([f"buffer_load_dwordx4 v[{8+4*k}:{11+4*k}], v27, s[44:47], s68 offen offset:{1024*k}" for k in range(2)], [11, 15], 27, False)
    unpack_reduce(2)
    e("v_lshlrev_b32 v25, 16, v25")
    x1_from(8, 20, 25)
    e("v_mov_b32 v25, v8")
    srd(48, 38, 1152)
    stamp(5)
    if P.get("x_amp") == "x1": e("s_memrealtime s[100:101]")
    gather([f"buffer_load_dwordx4 v[{8+4*k}:{11+4*k}], v27, s[44:47], s69 offen offset:{1024*k}" for k in range(2)], [11, 15], 27, False)
    stamp(6)
    unpack_reduce(2)
    bf16r(8, 8)
    e("v_mul_f32 v8, v24, v8")
    bf16r(8, 8)
    e("""v_add_f32 v8, v25, v8
         v_cvt_pk_bf16_f32 v8, v8, v8
         buffer_store_short v8, v23, s[48:51], 0 offen
         s_cmp_lg_u32 s66, 0
         s_cbranch_scc1 L_exit
         v_mov_b32 v9, s7
         s_mov_b64 exec, 1
         buffer_store_dword v9, v1, s[44:47], 0 offen sc1
         s_mov_b64 exec, -1""")
    if P.get("x_amp"):
        if P["x_amp"] == "end": e("s_memrealtime s[100:101]")
        e("""s_memrealtime s[80:81]
             s_waitcnt lgkmcnt(0)
             s_sub_u32 s54, s100, s98
             s_min_u32 s54, s54, 20000
             s_mul_i32 s54, s54, 4
             s_add_u32 s54, s54, s80""")
        e.label("L_amp")
        e("""s_memrealtime s[80:81]
             s_waitcnt lgkmcnt(0)
             s_sub_u32 s55, s54, s80
             s_cmp_gt_i32 s55, 0
             s_cbranch_scc1 L_amp""")
    e("s_branch L_exit")

    e.label("L_q")
    e("""s_sub_u32 s66, s5, 9
         s_and_b32 s67, s66, 1
         s_lshr_b32 s68, s66, 1
         s_mul_i32 s69, s67, 5
         s_add_u32 s69, s69, s6
         s_sub_u32 s89, 5, s67""")
    srd(8, 22, 576 * 8192)
    srd(48, 16, 1152)
    blk_voff(26, 8192)
    e("s_cmp_ge_u32 s6, s89\ns_cbranch_scc1 L_a_skip")
    e(f"""s_lshl_b32 s52, s69, 19
          s_lshl_b32 s54, s4, 10
          s_add_u32 s52, s52, s54
          s_lshl_b32 s54, s68, 7
          s_add_u32 s52, s52, s54
          s_lshl_b32 s54, s69, 7
          v_lshlrev_b32 v2, 1, v0
          buffer_load_ushort v25, v2, s[48:51], s54 offen""")
    for k in range(9): e(f"buffer_load_ushort v{9+k}, v2, s[48:51], 0 offen offset:{128*k}")
    blk_load(8, 26, 52, 8192, 32, P["DQ"], barrier_at=True)
    e("s_waitcnt vmcnt(8)\nv_lshlrev_b32 v25, 16, v25")
    for k in range(9): e(f"v_lshlrev_b32 v{9+k}, 16, v{9+k}")
    e("v_add_f32 v18, v9, v10")
    for k in range(2, 9): e(f"v_add_f32 v18, v18, v{9+k}")
    red("v_add_f32", [18])
    e(f"v_mul_f32 v18, {hex(f2u(1/576))}, v18\nv_readlane_b32 s90, v18, 63\nv_mov_b32 v19, 0")
    for k in range(9): e(f"v_subrev_f32 v{9+k}, s90, v{9+k}\nv_fmac_f32 v19, v{9+k}, v{9+k}")
    red("v_add_f32", [19])
    e(f"v_mul_f32 v19, {hex(f2u(1/576))}, v19\nv_readlane_b32 s91, v19, 63\nv_mov_b32 v18, s90\nv_mov_b32 v19, s91")
    ln_finish(25, 18, 19, 24, 2)
    e(f"""s_lshl_b32 s90, s69, 9
          s_add_u32 s90, s90, {H1}
          s_add_u32 s91, s90, {576*8}
          s_add_u32 s92, s90, {1152*8}
          s_add_u32 s93, s91, {1152*8}
          s_add_u32 s94, s92, {1152*8}
          s_add_u32 s95, s93, {1152*8}
          s_lshl_b32 s52, s4, 13
          s_lshr_b32 s54, s68, 2
          s_lshl_b32 s54, s54, 12
          s_add_u32 s52, s52, s54
          s_lshl_b32 s54, s67, 11
          s_add_u32 s52, s52, s54
          s_and_b32 s54, s68, 3
          s_lshl_b32 s54, s54, 9
          s_add_u32 s52, s52, s54
          s_add_u32 s52, s52, {H2}""")
    if P["prewrite"] and P["fast"]: prewrite8(52, 0)
    stamp(1)
    if P.get("x_nochain"):
        e("s_waitcnt vmcnt(0)"); stamp(2); e("s_branch L_gu_post")
    prepoll(90, [4 + 576 * 8 * k for k in range(6)])
    gather([f"buffer_load_dwordx2 v[{8+2*k}:{9+2*k}], v30, s[44:47], s{90+k} offen" for k in range(6)], [9, 11, 13, 15, 17, 19], 30, False)
    stamp(2)
    e("""v_add_f32 v8, v8, v12
         v_add_f32 v10, v10, v14
         v_add_f32 v8, v8, v16
         v_add_f32 v10, v10, v18
         v_cvt_pk_bf16_f32 v2, v8, v10
         v_lshlrev_b32 v8, 16, v2
         v_and_b32 v10, 0xffff0000, v2
         v_add_f32 v10, 1.0, v10""")
    bf16r(10, 10)
    e("v_mul_f32 v10, v24, v10")
    bf16r(10, 10)
    e("v_add_f32 v10, v10, v8\nv_cvt_pk_bf16_f32 v23, v10, v10")
    blk_mfma(23, 32, True)
    blk_reduce(PARTE, C_E, "s89", "L_gu_post")
    e("v_mov_b32 v9, s7")
    publish("buffer_store_dwordx2 v[8:9], v30, s[44:47], {so} offen", True, 52)
    e(f"v_mov_b32 v2, 1\nds_write_b32 v1, v2 offset:{C_G}")
    stamp(3)

    e.label("L_gu_post")
    e("""s_sub_u32 s66, s5, 9
         s_and_b32 s67, s66, 1
         s_lshr_b32 s68, s66, 1
         s_cmp_eq_u32 s67, 0
         s_cselect_b32 s12, s28, s30
         s_cselect_b32 s13, s29, s31
         s_and_b32 s13, s13, 0xffff""")
    e(f"s_mov_b32 s14, {576*9216}\ns_mov_b32 s15, 0x20000")
    srd(48, 16, 1152)
    pack_consts()
    blk_voff(26, 9216)
    e(f"""s_mul_i32 s52, s6, {64*9216}
          s_mul_i32 s54, s4, 9
          s_add_u32 s54, s54, s68
          s_lshl_b32 s54, s54, 7
          s_add_u32 s52, s52, s54
          s_lshl_b32 s54, s6, 7
          v_lshlrev_b32 v2, 1, v0
          buffer_load_ushort v25, v2, s[48:51], s54 offen
          s_lshl_b32 s90, s6, 9
          s_add_u32 s90, s90, {HMOD}
          s_add_u32 s91, s90, {576*8}
          s_add_u32 s92, s91, {576*8}
          s_lshl_b32 s93, s6, 11
          s_add_u32 s93, s93, {H4}
          s_lshl_b32 s94, s4, 1
          s_add_u32 s94, s94, s67
          s_mul_i32 s94, s94, {576*8}
          s_lshl_b32 s54, s68, 9
          s_add_u32 s94, s94, s54
          s_add_u32 s94, s94, {H5}
          v_lshlrev_b32 v27, 4, v0
          s_lshl_b32 s54, s6, 3
          v_mov_b32 v22, s54
          v_and_b32 v23, 15, v0
          v_lshlrev_b32 v23, 3, v23""")
    if P["prewrite"] and P["fast"]: prewrite8(94, 7)
    blk_load(12, 26, 52, 9216, 64, 1, tiles=range(P["NP1"]))
    lds_wait(1, *{"VI": (C_VI, 4), "VI2": (C_VI, 2), "PV": (C_PV, 1), "PUB": (C_PUB, 1), "KI": (C_KI, 1), "NONE": (C_KI, 0)}[P["p_gate"]])
    stamp(8)
    if P["NP2"]:
        blk_load(12, 26, 52, 9216, 64, 8, tiles=range(P["NP2"]))
        lds_wait(1, C_PUB, 1)
        P["NP1"] = P["NP2"]
    if P["DP9"] != P["DP"]:
        e("s_cmp_eq_u32 s6, 8\ns_cbranch_scc1 L_gu_9")
    blk_load(12, 26, 52, 9216, 64, P["DP"] + P["NP1"], tiles=range(P["NP1"], 8), dwait=P["DP"])
    if P["DP9"] != P["DP"]:
        e("s_branch L_gu_10")
        e.label("L_gu_9")
        blk_load(12, 26, 52, 9216, 64, P["DP9"] + P["NP1"], tiles=range(P["NP1"], 8), dwait=P["DP9"])
        e.label("L_gu_10")
    stamp(9)
    if P["hint"]:
        lds_wait(1, C_H, 1)
        stamp(10)
    if P.get("x_gudelay"):
        Ld = e.newlabel("dl")
        e("v_readlane_b32 s55, v31, 0")
        e(f"s_add_u32 s55, s55, {P['x_gudelay']}")
        e.label(Ld)
        e(f"s_sleep 2\ns_memrealtime s[80:81]\ns_waitcnt lgkmcnt(0)\ns_sub_u32 s54, s55, s80\ns_cmp_gt_i32 s54, 0\ns_cbranch_scc1 {Ld}")
    if P.get("x_nochain"):
        e("s_waitcnt vmcnt(0)"); stamp(10); e("s_branch L_exit")
    gather([f"buffer_load_dwordx2 v[{16+2*k}:{17+2*k}], v30, s[44:47], s{90+k} offen" for k in range(3)] +
           [f"buffer_load_dwordx4 v[{8+4*k}:{11+4*k}], v27, s[44:47], s93 offen offset:{1024*k}" for k in range(2)], [17, 19, 21, 11, 15], 27, False, fstamp=22)
    stamp(11)
    e("v_lshlrev_b32 v25, 16, v25\nv_add_f32 v20, 1.0, v20")
    bf16r(20, 20)
    unpack_reduce(2)
    x1_from(8, 16, 25)
    e("""v_readfirstlane_b32 s54, v8
         v_subrev_f32 v10, s54, v8
         v_mul_f32 v11, v10, v10""")
    red("v_add_f32", [10, 11])
    e(f"""v_mul_f32 v12, v10, v10
          v_mov_b32 v13, s54
          v_fmac_f32 v10, 0x42800000, v13
          v_fmac_f32 v11, 0xbc800000, v12
          s_mov_b32 s58, 0
          s_mov_b32 s59, 0x80000000
          s_mov_b64 exec, s[58:59]
          ds_write_b64 v22, v[10:11] offset:{STAT}
          s_mov_b64 exec, -1
          s_waitcnt lgkmcnt(0)
          s_barrier
          ds_read_b64 v[10:11], v23 offset:{STAT}
          v_cmp_gt_u32 vcc, 72, v23
          s_waitcnt lgkmcnt(0)
          v_mov_b32 v12, v10""")
    red("v_add_f32", [12], full=False)
    e(f"""v_mul_f32 v12, {hex(f2u(1/576))}, v12
          v_fmac_f32 v10, 0xc2800000, v12
          v_cndmask_b32 v10, 0, v10, vcc
          v_mul_f32 v10, v10, v10
          v_fmac_f32 v11, 0x3c800000, v10""")
    red("v_add_f32", [11], full=False)
    e(f"v_mul_f32 v11, {hex(f2u(1/576))}, v11")
    ln_finish(8, 12, 11, 9, 2)
    e("v_mul_f32 v9, v9, v20")
    bf16r(9, 9)
    e("v_add_f32 v9, v9, v18\nv_cvt_pk_bf16_f32 v23, v9, v9")
    stamp(12)
    blk_mfma(23, 64, True)
    blk_reduce(PARTP, C_PP, 9, "L_exit")
    bf16r(8, 8)
    e("v_mov_b32 v9, s7")
    publish("buffer_store_dwordx2 v[8:9], v30, s[44:47], {so} offen", True, 94)
    stamp(13)
    e("s_branch L_exit")

    e.label("L_wd")
    srd(8, 24, 4096 * 1152)
    blk_voff(26, 1152)
    e(f"""s_lshl_b32 s52, s4, 3
          s_add_u32 s52, s52, s6
          s_mul_i32 s52, s52, {64*1152}
          s_lshl_b32 s54, s5, 7
          s_add_u32 s52, s52, s54""")
    aw_consts()
    zero_lds()
    start_barrier()
    if diag: e("v_writelane_b32 v31, s80, 0")
    blk_load(8, 26, 52, 1152, 32, P["DWO"])
    def dn_setup():
        srd(12, 32, 4608 * 1152)
        e(f"""s_mul_i32 s97, s4, 9
              s_add_u32 s97, s97, s6
              s_mul_i32 s97, s97, {64*1152}
              s_lshl_b32 s54, s5, 7
              s_add_u32 s97, s97, s54""")
    dn_setup()
    if P["NDN1"]:
        e(f"s_waitcnt vmcnt({P['DWO']-1})")
        blk_load(12, 26, 97, 1152, 64, P["DWO"], tiles=range(P["NDN1"]))
    pack_consts()
    e(f"""s_lshl_b32 s90, s4, 1
          s_lshr_b32 s54, s6, 2
          s_add_u32 s90, s90, s54
          s_lshl_b32 s90, s90, 14
          s_and_b32 s54, s6, 3
          s_lshl_b32 s54, s54, 8
          s_add_u32 s90, s90, s54
          s_add_u32 s90, s90, {H3}
          v_lshrrev_b32 v25, 4, v0
          v_lshlrev_b32 v25, 12, v25
          v_and_b32 v2, 15, v0
          v_lshl_add_u32 v25, v2, 4, v25
          v_bfe_u32 v24, v0, 3, 2
          v_lshlrev_b32 v24, 6, v24
          v_lshrrev_b32 v2, 5, v0
          v_lshl_add_u32 v100, v2, 2, v24
          s_lshl_b32 s52, s5, 3
          s_add_u32 s52, s52, s4
          s_lshl_b32 s52, s52, 8
          s_add_u32 s52, s52, {H4}""")
    stamp(1)
    if P.get("x_nochain"):
        lds_wait(1, C_VI, 4); e("s_branch L_wd_down")
    e(f"""s_lshl_b32 s94, s4, 1
          s_lshr_b32 s54, s6, 2
          s_add_u32 s94, s94, s54
          s_lshl_b32 s94, s94, 11
          s_add_u32 s94, s94, {HML}
          v_lshrrev_b32 v2, 2, v0
          v_and_b32 v2, 12, v2
          v_add_u32 v2, v2, v0
          v_and_b32 v2, 15, v2
          v_lshlrev_b32 v27, 7, v2
          s_mov_b32 s88, {hex(LOG2E)}
          s_bitcmp1_b32 s6, 1
          s_cselect_b32 s95, 0, 16
          s_cselect_b64 s[82:83], -1, 0
          s_mul_i32 s91, s4, 9
          s_add_u32 s91, s91, s5
          s_lshl_b32 s91, s91, 7
          s_add_u32 s91, s91, {HINT}""")
    if P["prewrite_x"]:
        e(f"""s_cmp_lg_u32 s6, 0
              s_cbranch_scc1 L_wd_nopw
              s_xor_b32 s54, s7, 1
              v_mov_b32 v11, s54
              v_lshlrev_b32 v2, 4, v0
              s_add_u32 s55, s52, {H6-H4}
              s_mov_b64 exec, 0xffff
              buffer_store_dwordx4 v[8:11], v2, s[44:47], s52 offen sc1
              buffer_store_dwordx4 v[8:11], v2, s[44:47], s55 offen sc1
              s_mov_b64 exec, -1""")
        e.label("L_wd_nopw")
    lds_wait(1, C_PUB, 1)
    stamp(2)
    gather(["buffer_load_dwordx4 v[104:107], v27, s[44:47], s94 offen"] +
           [f"buffer_load_dwordx4 v[{8+4*k}:{11+4*k}], v25, s[44:47], s90 offen offset:{1024*k}" for k in range(4)],
           [107, 11, 15, 19, 23], [25, 27], True, fstamp=20)
    stamp(3)
    e("""v_lshlrev_b32 v104, s95, v104
         v_and_b32 v104, 0xffff0000, v104
         v_cndmask_b32_e64 v105, v105, v106, s[82:83]
         v_mov_b32 v106, v104""")
    for i, st in enumerate(["row_ror:8", "row_ror:4", "row_ror:2", "row_ror:1"]):
        b_ = 8 + 4 * i
        e(f"v_perm_b32 v{b_+3}, v{b_+1}, v{b_}, s65\nv_lshl_or_b32 v{b_+3}, v{b_+2}, 24, v{b_+3}")
        e(f"v_max_f32_dpp v106, v106, v106 {st} row_mask:0xf bank_mask:0xf")
    e("""v_sub_f32 v104, v104, v106
         v_mul_f32 v104, s88, v104
         v_exp_f32 v104, v104
         v_mul_f32 v105, v105, v104""")
    for k, st in enumerate(["row_ror:8", "row_ror:4", "row_ror:2", "row_ror:1"]):
        for i in range(4):
            if k == 0: e(f"v_mul_f32_dpp v{8+i}, v104, v{8+i} row_newbcast:0 row_mask:0xf bank_mask:0xf")
            else: e(f"v_fmac_f32_dpp v{8+i}, v104, v{8+4*k+i} row_newbcast:{k} row_mask:0xf bank_mask:0xf")
        e(f"v_add_f32_dpp v105, v105, v105 {st} row_mask:0xf bank_mask:0xf")
    e("""v_rcp_f32 v105, v105
         v_permlane32_swap_b32 v8, v10
         v_permlane32_swap_b32 v9, v11
         v_add_f32 v8, v8, v10
         v_add_f32 v9, v9, v11
         v_permlane16_swap_b32 v8, v9
         v_add_f32 v8, v8, v9
         v_mul_f32 v8, v8, v105""")
    e("v_cvt_pk_bf16_f32 v23, v8, v8\nv_mov_b32 v22, v100")
    blk_mfma(23, 32, True, vb=22, step=8)
    def hint_store():
        e("""s_mov_b64 exec, 1
             buffer_store_dword v101, v1, s[44:47], s91 offen
             s_mov_b64 exec, -1""")
    e("v_mov_b32 v101, s7")
    blk_reduce(PARTE, C_E, 8, "L_wd_wait", first=hint_store if P["hint"] == 1 else None)
    if P["hint"] == 2: hint_store()
    e("v_lshlrev_b32 v27, 4, v0")
    publish_cols_f16p(52)
    e(f"v_mov_b32 v2, 1\nds_write_b32 v1, v2 offset:{C_W}")
    stamp(4)
    e("s_branch L_wd_down")
    e.label("L_wd_9")
    dn_setup()
    pack_consts()
    blk_voff(26, 1152)
    blk_load(12, 26, 97, 1152, 64, 2, tiles=range(P["NDN1"]))
    e.label("L_wd_wait")
    if P["dn_gate"]: lds_wait(1, C_W, 1)
    e.label("L_wd_down")
    blk_voff(26, 1152)
    blk_load(12, 26, 97, 1152, 64, P["DDN"] + P["NDN1"], tiles=range(P["NDN1"], 8), dwait=P["DDN"])
    e.label("L_wd_down2")
    e(f"""s_mul_i32 s90, s4, {2*576*8}
          s_lshl_b32 s54, s6, 9
          s_add_u32 s90, s90, s54
          s_add_u32 s90, s90, {H5}
          s_add_u32 s91, s90, {576*8}
          s_lshl_b32 s52, s5, 3
          s_add_u32 s52, s52, s4
          s_lshl_b32 s52, s52, 8
          s_add_u32 s52, s52, {H6}
          v_mov_b32 v25, v30
          s_mov_b32 s92, {hex(f2u(0.044715))}""")
    stamp(8)
    if P.get("x_nochain"):
        e("s_waitcnt vmcnt(0)"); stamp(9); e("s_branch L_exit")
    gather([f"buffer_load_dwordx2 v[{8+2*k}:{9+2*k}], v25, s[44:47], s{90+k} offen" for k in range(2)], [9, 11], 25, True)
    stamp(9)
    KG = -2 * 0.7978845608028654 * 1.4426950408889634
    e(f"""v_mul_f32 v12, v8, v8
          v_fma_f32 v12, v12, s92, 1.0
          v_mul_f32 v12, v12, v8
          v_mul_f32 v12, {hex(f2u(KG))}, v12
          v_exp_f32 v12, v12
          v_add_f32 v12, 1.0, v12
          v_rcp_f32 v12, v12
          v_mul_f32 v12, v12, v8""")
    bf16r(12, 12)
    e("v_mul_f32 v12, v12, v10\nv_cvt_pk_bf16_f32 v23, v12, v12")
    blk_mfma(23, 64, True)
    blk_reduce(PARTP, C_PP, 9, "L_exit")
    e("v_lshlrev_b32 v27, 4, v0")
    publish_cols_f16p(52)
    stamp(10)

    e.label("L_exit")
    if diag:
        stamp(15)
        e("s_memtime s[100:101]\ns_waitcnt lgkmcnt(0)\ns_sub_u32 s54, s100, s98\nv_writelane_b32 v31, s54, 17")
        e(f"""s_getreg_b32 s54, hwreg(HW_REG_HW_ID)
              v_writelane_b32 v31, s54, 16
              s_mov_b32 exec_hi, 0
              v_lshlrev_b32 v2, 2, v0
              buffer_store_dword v31, v2, s[44:47], s96 offen""")
    e.label("L_end")
    e("s_endpgm")
    e.raw("L_code_end:")
    e.raw(f".fill ({CODE_KB}*1024 - (L_code_end-{KNAME}))/4, 4, 0xBF800000")
    e.raw("s_endpgm")
    e.raw(f""".section .rodata,"a"
.p2align 6
.amdhsa_kernel {KNAME}
  .amdhsa_next_free_vgpr 128
  .amdhsa_next_free_sgpr 102
  .amdhsa_accum_offset 128
  .amdhsa_group_segment_fixed_size 0
  .amdhsa_kernarg_size 112
  .amdhsa_user_sgpr_count 2
  .amdhsa_user_sgpr_kernarg_segment_ptr 1
  .amdhsa_system_sgpr_workgroup_id_x 1
.end_amdhsa_kernel""")
    txt = e.text()
    if diag:
        txt = txt.replace("    s_memrealtime s[80:81]\n    s_cmp_ge_u32 s3, 8",
                          f"    s_lshl_b32 s96, s2, 4\n    s_add_u32 s96, s96, s3\n    s_lshl_b32 s96, s96, 7\n    s_add_u32 s96, s96, {STAMPS}\n    s_memrealtime s[80:81]\n    s_cmp_ge_u32 s3, 8", 1)
    return txt

if __name__ == "__main__":
    kw = {}
    out = "cdna_kernels/" + NAME + ".s"
    for a in sys.argv[1:]:
        k, v = a.split("=")
        if k == "out": out = v
        else: kw[k] = eval(v)
    open(out, "w").write(gen(**kw))
```
